```python
import torch

def _softmax(x, axis=-1):
    return torch.softmax(x, dim=axis)
def _gelu(x):
    return torch.nn.functional.gelu(x, approximate="tanh")
def _silu(x):
    return torch.nn.functional.silu(x)
def _sigmoid(x):
    return torch.sigmoid(x)
def _layernorm(x, axis=-1, eps=1e-5):
    m = x.mean(dim=axis, keepdim=True)
    v = x.var(dim=axis, keepdim=True, unbiased=False)
    return (x - m) / torch.sqrt(v + eps)
def _scatter_add(tgt, idx, src, axis=0):
    return tgt.clone().index_add_(axis, idx, src)
def _segment_sum(src, seg, n):
    out = torch.zeros((n,) + src.shape[1:], dtype=src.dtype)
    return out.index_add_(0, seg, src)
def _pad(x, pw):
    flat = tuple(v for pair in reversed(pw) for v in pair)
    return torch.nn.functional.pad(x, flat)

kernel_name = 'standalone__deep_cross_pnn__recsys'

def setup_inputs():

    _w = (lambda a: (lambda t: t.to(torch.bfloat16) if t.is_floating_point() else t)(torch.as_tensor(a)))
    B, F, D, V = 4096, 100, 128, min(1000, 100000)
    H = 4 * D
    return {
        "idx": _w((lambda lo, hi, *s: torch.randint(lo, hi, s))(0, V, B, F).to(torch.int64)),
        "table": _w((lambda *s: torch.randn(*s, dtype=torch.bfloat16) * 1.6)(V, D) * (D ** -0.5)),
        "w_p": _w((lambda *s: torch.randn(*s, dtype=torch.bfloat16) * 0.05)(F * F) * ((F * F) ** -0.5)),
        "w1": _w((lambda *s: torch.randn(*s, dtype=torch.bfloat16) * 1.6)(F * D, H) * ((F * D) ** -0.5)),
        "b1": _w((lambda *s: torch.randn(*s, dtype=torch.bfloat16) * 6.4)(H) * 0.01),
        "w2": _w((lambda *s: torch.randn(*s, dtype=torch.bfloat16) * 0.05)(H) * (H ** -0.5)),
        "b2": _w((lambda *s: torch.randn(*s, dtype=torch.bfloat16) * 0.8)(1) * 0.01),
    }

def reference(idx, table, w_p, w1, b1, w2, b2):
    emb = table[idx]
    B = emb.shape[0]; F = emb.shape[1]; D = emb.shape[2]
    ip = torch.einsum('bid,bjd->bij', emb, emb)
    ip = ip.reshape(B, F * F)
    logit_p = ip @ w_p
    z = emb.reshape(B, F * D)
    h = _gelu(z @ w1 + b1)
    logit_d = h @ w2 + b2
    return logit_p + logit_d
```

```python
import sys, struct, math

OPT = dict(stamp=0, sg2=20, pk=0, sg1=6, tsp=2, sm=0, nost=0, nopd=0, nofma=0, noer=0, nogreedy=0, pfw=19, wd0=1, pfc=1, pfa=1, spin=4000, stint=3, pollp=56, fb=1)
for a in sys.argv[1:]:
    k, v = a.split("=")
    OPT[k] = int(v)

NAME = "standalone__deep_cross_pnn__recsys_kernel"

WS_ADDR = 0
WS_ADDR_SZ = 16 * 50 * 1024
WS_FL = 0x100000
WS_LP = 0x140000
WS_ST = 0x180000
WS_P = 0x200000
WS_P_SZ = 4 * 128 * 4096 * 8

TB1 = 65536
STG = 131072
STGSZ = 8448
GO = 156672
GT = GO + 3584
FR = GT + 2048
LDS_SZ = 163840
PS_HI = 0
WSX = 36864

WA, WB, TRA, DMAV, ADV, VW, VL = 1, 2, 3, 4, 5, 6, 7
SEL, IDX, UA, TRB = 8, 12, 13, 15
AD, G, D, AF, ACC = 16, 32, 64, 96, 128
S_IDX, S_TAB, S_W1, S_AD, S_P, S_DBG, S_T0, S_T1 = 4, 8, 12, 16, 20, 24, 28, 32
P_IDX, P_TAB, P_WP, P_W1, P_B1, P_W2, P_B2, P_OUT, P_DBG, P_WS = 64, 66, 68, 70, 72, 74, 76, 78, 80, 82


def f2h(x):
    return "0x%08x" % struct.unpack("<I", struct.pack("<f", x))[0]


class Stream:
    def __init__(self):
        self.items = []
        self.nlab = 0

    def i(self, text):
        for ln in text.split("\n"):
            self.items.append(("i", ln, None, None))

    __call__ = i

    def mem(self, cls, text, tag=None, opt=False):
        self.items.append(("o" if opt else "m", text, cls, tag))

    def wait(self, cls, tag, local=False):
        self.items.append(("l" if local else "w", None, cls, tag))

    def mark(self, name):
        self.items.append(("k", name, None, None))

    def drained(self, cls):
        self.items.append(("d", None, cls, None))

    def srd(self, d, base, size, off=0):
        if off:
            self.i(f"s_add_u32 s{d}, s{base}, {off}\ns_addc_u32 s{d+1}, s{base+1}, 0")
        else:
            self.i(f"s_mov_b32 s{d}, s{base}\ns_mov_b32 s{d+1}, s{base+1}")
        self.i(f"s_mov_b32 s{d+2}, {size}\ns_mov_b32 s{d+3}, 0x20000")

    def resolve(self):
        out = []
        issued = {"vm": [], "lg": []}
        done = {"vm": 0, "lg": 0}
        for kind, text, cls, tag in self.items:
            if kind == "i":
                out.append(text)
            elif kind == "k":
                out.append(("mark", text))
            elif kind in "mo":
                issued[cls].append((tag, kind == "o"))
                out.append(text)
            elif kind == "d":
                done[cls] = len(issued[cls])
            else:
                q = issued[cls]
                if tag == "ALL":
                    pos = len(q) - 1
                else:
                    idxs = [i for i, t in enumerate(q) if t[0] == tag]
                    assert idxs, f"wait for unknown tag {tag}"
                    pos = idxs[-1]
                n = sum(1 for t in q[pos + 1:] if not t[1])
                lim = 62 if cls == "vm" else 14
                if pos + 1 <= done[cls]:
                    out.append(("wait", cls, None))
                else:
                    out.append(("wait", cls, min(n, lim)))
                    if kind == "w": done[cls] = pos + 1
        return out


def wait_text(cls, n):
    return f"s_waitcnt {'vmcnt' if cls == 'vm' else 'lgkmcnt'}({n})"


def flat(items):
    out = []
    for it in items:
        if isinstance(it, tuple):
            if it[0] == "wait" and it[2] is not None:
                out.append(wait_text(it[1], it[2]))
        else:
            out.append(it)
    return out


def stamp(S, k, mode=0):
    if OPT["stamp"] and (k in (0, 6, 7) or OPT["sm"] == mode):
        S.i(f"s_memrealtime s[{84+2*k}:{85+2*k}]")


def prep_loads(S):
    GA = 128
    S("s_mul_i32 s42, s41, 96")
    S(f"v_lshl_add_u32 v144, v{VL}, 2, s42")
    S(f"v_lshlrev_b32 v145, 2, v{VL}\nv_add_u32 v145, 384-96, v145")
    S(f"v_cmp_gt_u32 vcc, 24, v{VL}")
    S("s_lshr_b32 s43, s3, 1\ns_lshl_b32 s43, s43, 5\ns_and_b32 s42, s3, 1\ns_add_u32 s43, s43, s42")
    S("v_cndmask_b32 v144, v145, v144, vcc")
    S("s_lshl_b32 s42, s40, 6\ns_add_u32 s43, s43, s42\ns_mul_i32 s43, s43, 400")
    S(f"v_mov_b32 v145, 0x7ffffff0\nv_cmp_gt_u32 vcc, 28, v{VL}")
    S("s_nop 1\nv_cndmask_b32 v144, v145, v144, vcc")
    for n in range(16):
        if n % 4 == 0 and n: S("s_add_u32 s43, s43, 3200")
        S.mem("vm", f"buffer_load_dword v{GA+n}, v144, s[{S_IDX}:{S_IDX+3}], s43 offen offset:{(n % 4) * 800}", "prep")


def prep_greedy(S, side=None):
    GA = 128
    F, F6, QD, TB, PSEL, OB0, OB1, LUT, C257, T, K, M1, M2, TA = 146, 147, 148, 149, 150, 151, 152, 153, 154, 155, 156, 157, 158, 160
    S(f"v_and_b32 v{F}, 3, v{VL}")
    S(f"v_lshlrev_b32 v{F6}, 6, v{F}")
    S(f"v_bfe_u32 v{QD}, v{VL}, 2, 3")
    S(f"s_lshl_b32 s42, s3, 9\ns_add_u32 s42, s42, {GT}")
    S(f"v_lshl_add_u32 v{TB}, v{QD}, 6, s42")
    S(f"v_lshl_add_u32 v{T}, v{VL}, 3, s42\nv_mov_b64 v[{TA}:{TA+1}], 0")
    S.mem("lg", f"ds_write_b64 v{T}, v[{TA}:{TA+1}]", "gz")
    S(f"v_mul_u32_u24 v{PSEL}, 0x010101, v{F}\nv_lshl_or_b32 v{PSEL}, v{F}, 24, v{PSEL}\nv_xor_b32 v{PSEL}, 0x03020100, v{PSEL}")
    S(f"s_lshl_b32 s42, s3, 2\ns_add_u32 s42, s42, {GO}")
    S(f"v_lshl_add_u32 v{OB0}, v{QD}, 9, s42")
    S(f"v_xor_b32 v{OB1}, 0x100, v{OB0}")
    S(f"s_mov_b32 s42, 0x24100400\ns_mov_b32 s43, 0x102\nv_mov_b32 v{LUT}, 0x3c3c3c3c\nv_mov_b32 v{C257}, 0x101")
    stamp(S, 1, 2)
    S.wait("vm", "prep")
    stamp(S, 2, 2)
    S("s_mov_b64 exec, 0x0fffffff")

    def ga(n):
        r = GA + n
        S(f"v_and_b32 v{T}, 7, v{r}")
        S(f"v_lshrrev_b32 v{r}, 2, v{r}")
        S(f"v_lshlrev_b32 v{T}, 4, v{T}")
        S(f"v_xor_b32 v{T}, v{T}, v{F6}")
        S(f"v_lshl_add_u32 v{r}, v{r}, 8, v{T}")
        S(f"v_lshrrev_b32 v{T}, 2, v{T}")
        S(f"v_add_u32 v{TA + (n & 1)}, v{T}, v{TB}")
    ga(0)
    for n in range(16):
        ta = TA + (n & 1)
        if n == 8: stamp(S, 3, 2)
        S.mem("lg", f"ds_read_b32 v{K}, v{ta}", ("gr", n))
        if side and side.get(n):
            S("s_mov_b64 exec, -1")
            for f in side[n]: f()
            S("s_mov_b64 exec, 0x0fffffff")
        if n + 1 < 16: ga(n + 1)
        S.wait("lg", ("gr", n))
        S(f"v_perm_b32 v{K}, v{LUT}, s42, v{K}")
        S(f"v_perm_b32 v{K}, v{K}, v{K}, v{PSEL}")
        S("s_nop 1")
        S(f"v_add_u32_dpp v{K}, v{K}, v{K} quad_perm:[1,0,3,2] row_mask:0xf bank_mask:0xf")
        S("s_nop 1")
        S(f"v_add_u32_dpp v{K}, v{K}, v{K} quad_perm:[2,3,0,1] row_mask:0xf bank_mask:0xf")
        S(f"v_add_u32 v{K}, 0x03020100, v{K}")
        S(f"v_min_u32_sdwa v{M1}, v{K}, v{K} dst_sel:DWORD dst_unused:UNUSED_PAD src0_sel:BYTE_0 src1_sel:BYTE_1")
        S(f"v_min_u32_sdwa v{M2}, v{K}, v{K} dst_sel:DWORD dst_unused:UNUSED_PAD src0_sel:BYTE_2 src1_sel:BYTE_3")
        S(f"v_min_u32 v{M1}, v{M1}, v{M2}")
        S(f"v_bitop3_b32 v{M1}, v{M1}, 3, v{F} bitop3:0x6a")
        S(f"v_lshlrev_b32 v{M2}, 3, v{M1}")
        S(f"v_lshlrev_b32 v{M2}, v{M2}, 1")
        S.mem("lg", f"ds_add_u32 v{ta}, v{M2}", "gadd")
        S(f"v_mul_u32_u24 v{M1}, v{M1}, v{C257}")
        mid = 1 if 4 <= n <= 11 else 0
        S(f"v_bitop3_b32 v{M1}, v{M1}, s43, v{OB0 + mid} bitop3:0x6a")
        S.mem("lg", f"ds_write_b16 v{M1}, v{GA+n} offset:{16*n}", "gw")
    S("s_mov_b64 exec, -1")
    S.wait("lg", "ALL")


def prep_store(S, lab):
    S(f"s_cmp_lg_u32 s3, 0\ns_cbranch_scc1 {lab}")
    S(f"v_lshlrev_b32 v144, 4, v{VL}\nv_add_u32 v144, {GO}, v144")
    for i in range(4):
        S.mem("lg", f"ds_read_b128 v[{128+4*i}:{131+4*i}], v144 offset:{1024*i}", "go", opt=True)
    S("s_lshr_b32 s42, s40, 4\ns_lshl_b32 s43, s41, 2\ns_add_u32 s42, s42, s43\ns_mul_i32 s42, s42, 50")
    S("s_lshr_b32 s43, s40, 1\ns_lshl_b32 s44, s41, 1\ns_sub_u32 s43, s43, s44\ns_and_b32 s43, s43, 7")
    S("s_add_u32 s42, s42, s43\ns_lshl_b32 s42, s42, 10")
    S("s_and_b32 s44, s40, 1\ns_lshl_b32 s44, s44, 9\ns_add_u32 s42, s42, s44")
    S(f"v_and_b32 v145, 31, v{VL}\nv_lshlrev_b32 v145, 4, v145")
    S(f"v_lshrrev_b32 v146, 5, v{VL}\nv_lshl_add_u32 v145, v146, 13, v145")
    S("s_cmp_lt_u32 s43, 2\ns_cselect_b32 s44, 32, 0")
    S(f"v_cmp_gt_u32 vcc, s44, v{VL}\nv_mov_b32 v146, 0x7ffffff0")
    S("s_waitcnt lgkmcnt(0)")
    S("v_cndmask_b32 v146, v146, v145, vcc")
    for i in range(4):
        S.mem("vm", f"buffer_store_dwordx4 v[{128+4*i}:{131+4*i}], v{146 if i == 3 else 145}, s[{S_AD}:{S_AD+3}], s42 offen sc1", "pst", opt=True)
        if i < 3: S("s_add_u32 s42, s42, 16384")
    S(f"{lab}:")


def gen():
    S = Stream()
    S(f".globl {NAME}\n.p2align 8\n.type {NAME},@function\n{NAME}:")
    S("s_cmp_ge_u32 s2, 256\ns_cbranch_scc1 L_END")
    stamp(S, 0)
    S("s_load_dwordx16 s[64:79], s[0:1], 0")
    S("s_load_dwordx4 s[80:83], s[0:1], 64")
    S(f"v_lshrrev_b32 v{VW}, 6, v0")
    S(f"v_and_b32 v{VL}, 63, v0")
    S(f"v_readfirstlane_b32 s3, v{VW}")
    S("s_and_b32 s36, s2, 7\ns_lshl_b32 s36, s36, 3\ns_bfe_u32 s37, s2, 0x30003\ns_add_u32 s36, s36, s37")
    S("s_lshr_b32 s37, s2, 6")
    S("s_lshr_b32 s40, s2, 2\ns_and_b32 s41, s2, 3")
    S(f"v_lshlrev_b32 v{ADV}, 4, v{VL}")
    S("s_lshl_b32 s38, s36, 4\ns_lshl_b32 s39, s3, 17\ns_add_u32 s38, s38, s39")
    S(f"v_lshl_add_u32 v{DMAV}, v{VL}, 10, s38")
    S("s_mul_i32 s45, s37, 24*131072")
    S("s_add_u32 s46, s45, 24*131072")
    S(f"s_mul_i32 s47, s3, 2112\ns_add_u32 s47, s47, {STG}")
    S(f"s_add_u32 s48, s47, {3*STGSZ}")
    S("s_mov_b32 s49, s3")
    S(f"v_and_b32 v44, 15, v{VL}\nv_lshrrev_b32 v45, 4, v{VL}")
    for jj in range(4):
        S(f"v_add_u32 v{40+jj}, {4*jj}, v45\nv_xor_b32 v{40+jj}, v{40+jj}, v44\nv_lshlrev_b32 v{40+jj}, 4, v{40+jj}")
        S(f"v_lshl_add_u32 v{40+jj}, v45, 8, v{40+jj}")
    S("s_lshl_b32 s50, s3, 16")
    S("s_lshl_b32 s51, s3, 14")
    S("s_waitcnt lgkmcnt(0)")
    S.srd(S_IDX, P_IDX, 4096 * 400)
    prep_loads(S)
    S.srd(S_W1, P_W1, 12800 * 1024)

    def wdma(half, tag, opt=False):
        if half == 0:
            S("s_mov_b32 m0, s47\ns_nop 0")
            S.mem("vm", f"buffer_load_dwordx4 v{DMAV}, s[{S_W1}:{S_W1+3}], s45 offen lds", tag, opt)
        else:
            S("s_add_u32 m0, s47, 1024\ns_add_u32 s44, s45, 65536")
            S.mem("vm", f"buffer_load_dwordx4 v{DMAV}, s[{S_W1}:{S_W1+3}], s44 offen lds", tag, opt)

    def wdma_adv():
        S(f"s_add_u32 s47, s47, {STGSZ}")
        S("s_cmp_eq_u32 s47, s48")
        S(f"s_cselect_b32 s44, {3*STGSZ}, 0\ns_sub_u32 s47, s47, s44")
        S("s_add_u32 s45, s45, 4*131072")
        S("s_cmp_eq_u32 s45, 100*131072\ns_cselect_b32 s49, 0xff, s49")
        S("s_cmp_eq_u32 s45, s46\ns_cselect_b32 s45, 96*131072, s45")

    def wsite(k, tag):
        S.nlab += 1
        lab = f"L_ws{k}_@{S.nlab}"
        S(f"s_cmp_eq_u32 s49, {k & 3}\ns_cbranch_scc0 {lab}")
        wdma(k >> 2, tag, True)
        S(f"{lab}:")

    S.srd(S_TAB, P_TAB, 256000)
    S.srd(S_DBG, P_DBG, 256)
    S("s_cmp_lt_u32 s2, 8\ns_cselect_b32 s44, s3, 0\ns_cmp_eq_u32 s44, 1\ns_cbranch_scc0 L_nn")
    S("s_memrealtime s[42:43]\ns_waitcnt lgkmcnt(0)\ns_or_b32 s42, s42, 1")
    S(f"v_mov_b32 v48, s42\nv_mov_b32 v49, 0\nv_lshlrev_b32 v50, 20, v{VL}")
    S.mem("vm", f"buffer_atomic_cmpswap v[48:49], v50, s[{S_DBG}:{S_DBG+3}], 0 offen sc1", "nn", opt=True)
    S("L_nn:")
    S(f"v_lshlrev_b32 v46, 7, v{VL}\nv_mov_b32 v49, 0x7ff00000\nv_cmp_gt_u32 vcc, 16, v{VL}")
    S("s_lshr_b32 s44, s2, 3\ns_lshl_b32 s44, s44, 13\ns_lshl_b32 s52, s3, 11\ns_add_u32 s44, s44, s52")
    S("v_cndmask_b32 v48, v49, v46, vcc")
    S.mem("vm", f"buffer_load_dword v47, v48, s[{S_TAB}:{S_TAB+3}], s44 offen", "pft")

    def pfw(part):
        nl, ph0 = {0: (32, 0), 1: (64, 2), 2: (16, 6)}[part]
        S(f"v_and_b32 v48, 15, v{VL}\nv_lshlrev_b32 v48, 10, v48\nv_lshrrev_b32 v49, 4, v{VL}\nv_lshl_add_u32 v48, v49, 19, v48")
        S(f"v_mov_b32 v49, 0x7ff00000\nv_cmp_gt_u32 vcc, {nl}, v{VL}")
        S("s_and_b32 s52, s36, 7\ns_lshl_b32 s52, s52, 16\ns_lshl_b32 s44, s3, 14\ns_add_u32 s52, s52, s44\ns_lshl_b32 s44, s36, 4\ns_add_u32 s52, s52, s44")
        if part < 2:
            S(f"s_mul_i32 s44, s37, 24*131072\ns_add_u32 s52, s52, s44\ns_add_u32 s52, s52, {ph0*4*131072}")
        else:
            S("s_add_u32 s52, s52, 96*131072")
        S("v_cndmask_b32 v48, v49, v48, vcc")
        S.mem("vm", f"buffer_load_dword v47, v48, s[{S_W1}:{S_W1+3}], s52 offen", "pfw")

    pfw(0)
    TSL = [0, 8192, TB1, TB1 + 8192, TB1, TB1 + 8192, 8192, TB1]

    def tslot(nb):
        return TSL[nb]

    def tdma(nb, j):
        if j % 2 == 0:
            S(f"s_add_u32 m0, s51, {tslot(nb) + (j & ~3) * 1024}")
            S(f"s_add_u32 s52, s50, {(nb * 8 + (j & ~3)) * 1024}")
        S.mem("vm", f"buffer_load_dwordx4 v{40 + (j & 3)}, s[{S_TAB}:{S_TAB+3}], s52 offen offset:{(j & 3) * 1024} lds", ("td", nb))

    if OPT["pfc"]:
        S(f"s_getpc_b64 s[{S_T0}:{S_T0+1}]\nL_PC:\ns_mov_b32 s{S_T0+2}, L_CODE_END-L_PC\ns_mov_b32 s{S_T0+3}, 0x20000")
        S(f"v_lshlrev_b32 v46, 7, v{VL}\nv_mov_b32 v49, 0x7ff00000\nv_cmp_gt_u32 vcc, 2, v{VL}")
        S("s_lshr_b32 s44, s2, 3\ns_lshl_b32 s44, s44, 10\ns_lshl_b32 s52, s3, 8\ns_add_u32 s44, s44, s52")
        S("v_cndmask_b32 v46, v49, v46, vcc")
        S.mem("vm", f"buffer_load_dword v47, v46, s[{S_T0}:{S_T0+3}], s44 offen", "pfc")
    S.srd(S_AD, P_WS, WS_ADDR_SZ, WS_ADDR)
    S.srd(S_P, P_WS, WS_P_SZ, WS_P)
    S.srd(S_T1, P_WS, 8192, WS_FL)
    S(f"v_and_b32 v13, 31, v{VL}\nv_lshrrev_b32 v14, 2, v13\nv_and_b32 v13, 3, v13")
    S("v_lshlrev_b32 v13, 4, v13\nv_lshl_add_u32 v13, v14, 8, v13")
    S(f"v_lshrrev_b32 v15, 5, v{VL}\nv_lshl_add_u32 v13, v15, 7, v13")
    S(f"v_lshl_add_u32 v13, v{VW}, 14, v13")
    S("v_and_b32 v14, 1, v14")
    S(f"v_lshl_add_u32 v{WA}, v14, 6, v13")
    S(f"v_xor_b32 v{WB}, 64, v{WA}")
    S(f"v_xor_b32 v13, v44, v15\nv_lshlrev_b32 v13, 4, v13\nv_and_b32 v14, 31, v{VL}\nv_lshl_add_u32 v13, v14, 8, v13")
    S(f"v_lshl_add_u32 v32, v{VW}, 14, v13")
    for ks in range(1, 8):
        S(f"v_xor_b32 v{32+ks}, {32*ks}, v32")
    for ks in range(8):
        S(f"v_xor_b32 v{56+ks}, 0x10000, v{32+ks}")
    S(f"v_and_b32 v13, 1, v{VL}\nv_bfe_u32 v14, v{VL}, 4, 1\nv_lshl_add_u32 v13, v13, 1, v14")
    S("v_mul_u32_u24 v13, 2112, v13")
    S(f"v_bfe_u32 v14, v{VL}, 2, 2\nv_lshl_add_u32 v14, v15, 3, v14\nv_lshl_add_u32 v13, v14, 4, v13")
    S(f"v_bfe_u32 v14, v{VL}, 1, 1\nv_lshl_add_u32 v13, v14, 3, v13")
    S(f"v_add_u32 v{TRA}, {STG}, v13")
    S(f"v_mov_b32 v{TRB}, v{TRA}")
    S(f"v_bfe_u32 v13, v{VL}, 4, 1\nv_bfe_u32 v14, v{VL}, 3, 1\nv_cmp_eq_u32 vcc, v13, v14")
    S(f"v_mov_b32 v13, 0x3f80\nv_bfe_u32 v14, v{VL}, 2, 1")
    S("v_cndmask_b32 v13, 0, v13, vcc")
    S("v_cmp_eq_u32 vcc, 0, v14")
    S("s_nop 1")
    S(f"v_cndmask_b32 v{SEL}, 0, v13, vcc")
    S(f"v_xor_b32 v{SEL+1}, v{SEL}, v13")
    S(f"v_mov_b32 v{SEL+2}, v{SEL}\nv_mov_b32 v{SEL+3}, v{SEL+1}")
    S(f"v_and_b32 v13, 3, v{VL}")
    S(f"v_mul_u32_u24 v{IDX}, 0x5555, v13")
    S("s_mov_b32 s53, 0x10000")
    S("s_mov_b32 s54, 0")
    S("s_lshl_b32 s55, s37, 2\ns_add_u32 s55, s55, s3\ns_mul_i32 s55, s55, 51200")
    stamp(S, 1)
    gside = {n: [] for n in range(16)}
    for k in range(32):
        gside[k // 2 if OPT["tsp"] == 2 else k // 4].append(lambda k=k: tdma(k >> 3, k & 7))
    gside[OPT["wd0"]] = [lambda: (wdma(0, ("dma", 0)), wdma(1, ("dma", 0)), wdma_adv())] + gside[OPT["wd0"]]
    gside[10].append(lambda: S.mem("vm", f"buffer_load_dword v51, v50, s[{S_DBG}:{S_DBG+3}], 0 offen sc1", "nld"))
    S("v_mov_b32 v50, 0")
    prep_greedy(S, gside)
    stamp(S, 4, 2)
    S.wait("vm", ("dma", 0))
    S("s_barrier")
    stamp(S, 2)
    stamp(S, 5, 2)

    def adload(c):
        r = AD + (c & 3) * 4
        S.mem("vm", f"buffer_load_dwordx4 v[{r}:{r+3}], v{ADV}, s[{S_AD}:{S_AD+3}], s55 offen offset:{(c & 3) * 1024} sc1", ("ad", c))
        if (c & 3) == 3:
            S("s_add_u32 s55, s55, 4096")

    def trread(ks, half, tag):
        r = AF + ks * 4 + half * 2
        S.mem("lg", f"ds_read_b64_tr_b16 v[{r}:{r+1}], v{TRA} offset:{ks*256 + half*64}", tag)

    def tr_advance():
        S(f"s_add_u32 s54, s54, {STGSZ}")
        S(f"s_cmp_eq_u32 s54, {3*STGSZ}")
        S("s_cselect_b32 s54, 0, s54")
        S(f"v_add_u32 v{TRA}, s54, v{TRB}")

    def tread(nb, ks):
        if ks == 0:
            S.wait("vm", ("td", nb))
        k = nb * 8 + ks
        S.mem("lg", f"ds_read_b128 a[{4*k}:{4*k+3}], v{(56 if TSL[nb] >= TB1 else 32)+ks} offset:{TSL[nb] & 0xffff}", ("tr", nb, ks))

    t_jobs = {g: [] for g in range(64)}
    rd = [(nb, ks) for nb in (1, 2, 3) for ks in range(8)]
    for n, x in enumerate(rd): t_jobs[n // 3].append(("r",) + x)
    dm = [(nb, j) for nb in (6, 4, 5) for j in range(8)]
    for n, x in enumerate(dm): t_jobs[9 + n // 2].append(("d",) + x)
    for n in range(8): t_jobs[24 + n].append(("r", 4, n))
    rd = [(nb, ks) for nb in (5, 6) for ks in range(8)]
    for n, x in enumerate(rd): t_jobs[32 + n // 2].append(("r",) + x)
    for n in range(8): t_jobs[33 + n // 2].append(("d", 7, n))
    for n in range(8): t_jobs[48 + n].append(("r", 7, n))
    PREV = {4: 2, 5: 3, 6: 1, 7: 4}

    def tjobs(g):
        for kind, nb, x in t_jobs[g]:
            if kind == "r": tread(nb, x)
            else:
                if x == 0: S.wait("lg", ("tr", PREV[nb], 7))
                tdma(nb, x)

    for ks in range(8):
        for h in range(2): trread(ks, h, ("af", 0, ks))
    tr_advance()
    prep_store(S, "L_pst")
    S.wait("vm", "nld")
    S(f"s_mov_b32 s42, {OPT['spin']}")
    S("L_non:")
    S("v_readfirstlane_b32 s56, v51")
    S("s_cmp_lg_u32 s56, 0\ns_cbranch_scc1 L_nond")
    S(f"buffer_load_dword v51, v50, s[{S_DBG}:{S_DBG+3}], 0 offen sc1")
    S("s_waitcnt vmcnt(0)\ns_sub_u32 s42, s42, 1\ns_cmp_lg_u32 s42, 0\ns_cbranch_scc1 L_non")
    S("L_nond:")
    for ks in range(8): tread(0, ks)

    OFF = 70
    NT = 6 * 32 + 8

    def C(tile, i):
        d = D + (tile & 1) * 16 + (i >> 2) * 8
        i &= 3
        S(f"v_cvt_pk_bf16_f32 v{d+i}, v{d+2*i}, v{d+2*i+1}")

    def W(tile, h, tag):
        d = D + (tile & 1) * 16 + h * 8
        S.mem("lg", f"ds_write_b128 v{WB if h else WA}, v[{d}:{d+3}] offset:{(tile & 7)*2048}", tag)

    def U(gt):
        if not (0 <= gt < NT): return
        c = gt >> 2
        if gt % 32 == 0:
            S("s_xor_b32 s53, s53, 0x10000")
        if (gt & 3) == 0:
            S.wait("vm", ("ad", c))
        a = AD + (c & 3) * 4 + (gt & 3)
        S(f"v_add_u32_sdwa v{UA}, v{a}, s53 dst_sel:DWORD dst_unused:UNUSED_PAD src0_sel:WORD_0 src1_sel:DWORD")
        S(f"v_add_u32_sdwa v{UA+1}, v{a}, s53 dst_sel:DWORD dst_unused:UNUSED_PAD src0_sel:WORD_1 src1_sel:DWORD")

    def R(gt):
        if not (0 <= gt < NT): return
        g = G + (gt & 3) * 8
        S.mem("lg", f"ds_read_b128 v[{g}:{g+3}], v{UA}", ("g", gt))
        S.mem("lg", f"ds_read_b128 v[{g+4}:{g+7}], v{UA+1}", ("g", gt))

    def SM(gt):
        if not (0 <= gt < NT): return
        S.wait("lg", ("g", gt))
        g = G + (gt & 3) * 8
        a = ACC + (gt & 31) * 4
        S(f"v_smfmac_f32_16x16x64_bf16 v[{a}:{a+3}], v[{SEL}:{SEL+3}], v[{g}:{g+7}], v{IDX}")

    def M(p, nb, ks):
        if p is None: return
        if p == 0:
            S.wait("lg", ("tr", nb, ks))
        if nb == 0:
            S.wait("lg", ("af", p, ks))
        d = D + (nb & 1) * 16
        k = nb * 8 + ks
        c = "0" if ks == 0 else f"v[{d}:{d+15}]"
        S(f"v_mfma_f32_32x32x16_bf16 v[{d}:{d+15}], v[{AF+4*ks}:{AF+4*ks+3}], a[{4*k}:{4*k+3}], {c}")

    def pack(tq):
        a = ACC + tq * 16
        for i in range(8):
            S(f"v_cvt_pk_bf16_f32 v{a+i}, v{a+2*i}, v{a+2*i+1}")

    LP, FA, FA6, STV = 0, 0, 0, 0
    pn = {}

    def pnn_consts():
        c2, c3 = ACC + 40, ACC + 56
        pn["LP"] = c2
        pn["FA"] = c2 + 4
        pn["FB"] = c3
        pn["F6"] = c3 + 4
        t0, t1, t2 = D, D + 1, D + 2
        S(f"v_and_b32 v{t0}, 15, v{VL}\nv_lshrrev_b32 v{t1}, 4, v{VL}\nv_and_b32 v{t2}, 3, v{VL}")
        for jj in range(4):
            r = pn["LP"] + jj
            S(f"v_add_u32 v{r}, {4*jj}, v{t1}\nv_xor_b32 v{r}, v{r}, v{t0}\nv_lshlrev_b32 v{r}, 4, v{r}")
            S(f"v_add_u32 v{r}, {3072 - 1024*jj}, v{r}")
        S(f"s_add_u32 s57, s51, {TB1}")
        S(f"s_mul_i32 s58, s3, 9216")
        for ks in range(4):
            a, b, c = pn["FA"] + ks, pn["FB"] + ks, pn["F6"] + ks
            S(f"v_add_u32 v{a}, {4*ks}, v{t1}")
            S(f"v_xor_b32 v{c}, v{a}, v{t2}\nv_xor_b32 v{a}, v{a}, v{t0}")
            S(f"v_lshlrev_b32 v{a}, 4, v{a}\nv_lshlrev_b32 v{c}, 4, v{c}")
            S(f"v_lshl_add_u32 v{a}, v{t0}, 8, v{a}\nv_lshl_add_u32 v{c}, v{t2}, 8, v{c}")
            S(f"v_add_u32 v{b}, s58, v{a}\nv_add_u32 v{c}, s58, v{c}\nv_add_u32 v{a}, s57, v{a}")
        S(f"v_cmp_gt_u32 vcc, 4, v{t0}\nv_mov_b32 v{t2}, 0x100000")
        S("s_nop 0")
        for ks in range(4):
            S(f"v_cndmask_b32 v{pn['F6']+ks}, v{t2}, v{pn['F6']+ks}, vcc")
        S(f"s_sub_u32 s{S_TAB}, s{P_TAB}, 3072\ns_subb_u32 s{S_TAB+1}, s{P_TAB+1}, 0")
        S(f"s_mov_b32 s{S_TAB+2}, {256000 + 3072}\ns_mov_b32 s{S_TAB+3}, 0x20000")

    def ixreg(bi, I):
        if bi == 0:
            return AF + 4 * I
        k = ((bi - 1) * 7 + I) % 8
        return ACC + 16 * (4 + (k >> 1)) + 8 + 4 * (k & 1)

    def ixload(bi, I):
        r = ixreg(bi, I)
        if I < 6:
            S.mem("vm", f"buffer_load_dwordx4 v[{r}:{r+3}], v{pn['IXV']}, s[{S_IDX}:{S_IDX+3}], s59 offen offset:{400*bi + 16*I}", ("ix", bi, I))
        else:
            S.mem("vm", f"buffer_load_dword v{r}, v{pn['IXV']}, s[{S_IDX}:{S_IDX+3}], s59 offen offset:{400*bi + 96}", ("ix", bi, I))

    def pdma(bi, I, jj):
        r = ixreg(bi, I) + jj
        if jj == 0:
            S.wait("vm", ("ix", bi, I))
            S(f"s_add_u32 m0, s57, {I*4096}" if I < 4 else f"s_add_u32 m0, s58, {(I-4)*4096}")
        S(f"v_lshl_add_u32 v{r}, v{r}, 8, v{pn['LP']+jj}")
        S.mem("vm", f"buffer_load_dwordx4 v{r}, s[{S_TAB}:{S_TAB+3}], 0 offen offset:{jj*1024} lds", ("pd", bi, I))

    def pdma_rb(bi, I):
        for jj in range(4 if I < 6 else 1): pdma(bi, I, jj)

    STV = DMAV

    def store_setup():
        S(f"v_and_b32 v{STV}, 15, v{VL}\nv_lshlrev_b32 v{STV}, 4, v{STV}")
        S(f"v_bfe_u32 v{D}, v{VL}, 4, 1\nv_lshl_add_u32 v{STV}, v{D}, 15, v{STV}")
        S(f"v_lshrrev_b32 v{D}, 5, v{VL}\nv_lshl_add_u32 v{STV}, v{D}, 9, v{STV}")
        S("s_lshl_b32 s45, s37, 22\ns_lshl_b32 s46, s36, 16\ns_add_u32 s45, s45, s46")
        S("s_lshl_b32 s46, s3, 13\ns_add_u32 s45, s45, s46")
        S("s_lshl_b32 s46, s37, 1")

    def pstore(tq):
        S(f"s_add_u32 s52, s46, {tq}\ns_and_b32 s52, s52, 7\ns_lshl_b32 s52, s52, 10\ns_add_u32 s52, s52, s45")
        for h in range(2):
            a = ACC + 16 * tq + 4 * h
            S.mem("vm", f"buffer_store_dwordx4 v[{a}:{a+3}], v{STV}, s[{S_P}:{S_P+3}], s52 offen offset:{256*h} sc1", "pstore")

    def ereg(bi, I, ks):
        return (bi & 1) * 112 + (I * 4 + ks) * 4

    def eread(bi, I, ks):
        if ks == 0:
            S.wait("vm", ("pd", bi, I))
        a = ereg(bi, I, ks)
        if I < 4:
            adr, off = pn["FA"] + ks, I * 4096
        elif I < 6:
            adr, off = pn["FB"] + ks, (I - 4) * 4096
        else:
            adr, off = pn["F6"] + ks, 8192
        S.mem("lg", f"ds_read_b128 a[{a}:{a+3}], v{adr} offset:{off}", ("er", bi, I))

    def eread_rb(bi, I):
        for ks in range(4): eread(bi, I, ks)

    def refill(bi, I):
        S.wait("lg", ("er", bi - 1, I))
        pdma_rb(bi, I)

    last_pair = NT - 1 + OFF
    GO_P = {0: 0, 1: 1, 2: None, 3: 2, 4: 3, 5: 4, 6: 5, 7: 6, 8: None}
    for pi in range(0, last_pair + 1):
        seg, gi = pi >> 5, pi & 31
        nb, j = gi >> 2, gi & 3
        p = GO_P[seg]
        if gi == 0:
            S.mark(("seg", seg))
            if seg == 2: stamp(S, 4)
            if seg == 1: stamp(S, 3)
        if seg == 0 and gi in (0, 4, 12, 20, 28): stamp(S, {0: 1, 4: 2, 12: 3, 20: 4, 28: 5}[gi], 3)
        if seg == 1 and gi in (0, 8, 16, 27, 28): stamp(S, {0: 1, 8: 2, 16: 3, 27: 4, 28: 5}[gi], 4)
        if seg == 8 and gi in (0, 3, 6, 9): stamp(S, {0: 1, 3: 2, 6: 3, 9: 4}[gi], 5)
        if p is not None:
            T = p * 8 + nb - 1
        else:
            T = 55 if (seg == 8 and nb == 0) else -1
        cv = 0 <= T < 56
        if nb == 0:
            sch = {0: (["C0"], ["C1", "C2", "C3", "C4"], ["C5"]), 1: (["C6"], ["W0"], ["C7"]), 2: ([], ["W1"], []), 3: ([], [], [])}
        elif nb == 1:
            sch = {0: (["C0"], ["C1", "C2", "C3"], ["C4"]), 1: (["C5"], ["C6", "C7"], []), 2: ([], ["W0"], []), 3: ([], ["W1"], [])}
        else:
            sch = {0: (["C0"], ["C1", "C2", "C3"], ["C4"]), 1: (["C5"], ["W0"], ["C6"]), 2: (["C7"], [], []), 3: ([], ["W1"], [])}
        ga, gb, gs = sch[j]
        if seg <= 1 and j == 0:
            ga, gb = [], ga + gb

        def do(ops):
            if not cv: return
            for o in ops:
                if o[0] == "C": C(T, int(o[1]))
                else: W(T, int(o[1]), ("w", T))

        if seg == 8 and gi == 0:
            pn["IXV"] = TRB
            S(f"v_lshrrev_b32 v{TRB}, 4, v{VL}\nv_mul_u32_u24 v{TRB}, 100, v{TRB}")
            S("L_CD:")
            S("s_lshl_b32 s59, s60, 4\ns_lshl_b32 s44, s3, 2\ns_add_u32 s59, s59, s44\ns_mul_i32 s59, s59, 400")
            S.wait("lg", ("af", 7, 7))
            for I in range(7): ixload(0, I)
            S.srd(S_T0, P_WP, 20000)
            S("v_lshlrev_b32 v0, 10, v6\nv_add_u32 v0, v0, v5")
            S("s_lshl_b32 s44, s3, 10")
            for i in range(5):
                S(f"s_add_u32 m0, s44, {STG + i*4096}\ns_mov_b32 s43, {i*4096}")
                S.mem("vm", f"buffer_load_dwordx4 v0, s[{S_T0}:{S_T0+3}], s43 offen lds", "wp")
            S("s_cmp_lg_u32 s61, 0\ns_cbranch_scc1 L_CD2")
        M(p, nb, 2 * j)
        R(pi + 3 - OFF)
        if nb == 7 and p is not None:
            trread(2 * j, 0, ("af", p + 1, 2 * j)); trread(2 * j, 1, ("af", p + 1, 2 * j))
        if seg == 0: tjobs(2 * gi)
        U(pi + 4 - OFF)
        do(ga)
        M(p, nb, 2 * j + 1)
        do([o for o in gb if o[0] == "W"])
        if nb == 7 and p is not None:
            trread(2 * j + 1, 0, ("af", p + 1, 2 * j + 1)); trread(2 * j + 1, 1, ("af", p + 1, 2 * j + 1))
        if seg == 0: tjobs(2 * gi + 1)
        gt = pi + 4 - OFF
        if 0 <= gt and (gt < NT - 16 or seg == 7) and (gt & 3) == 3:
            adload((gt >> 2) + 4)
        if pi == OPT["pfw"]: pfw(1); pfw(2)
        if seg == 0:
            if gi in (0, 1, 2, 3, 4, 5, 6, 7): wsite(gi, ("dma", 1))
            if gi == 8: wdma_adv()
            if gi in (24, 26, 28, 30): wsite((gi - 24) // 2, ("dma", 2))
        if seg == 1:
            if gi in (0, 2, 4, 6): wsite(4 + gi // 2, ("dma", 2))
            if gi == 7: wdma_adv()
            if gi >= 8 and gi % 2 == 0 and gi < 24: wsite((gi - 8) // 2, ("dma", 3))
            if gi == 24: wdma_adv()
            S(f"v_mov_b64 v[{ACC+4*gi}:{ACC+4*gi+1}], 0\nv_mov_b64 v[{ACC+4*gi+2}:{ACC+4*gi+3}], 0")
        if seg == 2 and gi >= 6 and gi % 4 == 2: wsite((gi - 6) // 4, ("dma", 4))
        if 3 <= seg <= 7:
            if gi == 2:
                wsite(7, ("dma", p + 2)); wdma_adv()
            elif gi % 4 == 2: wsite((gi - 6) // 4, ("dma", p + 3))
        do([o for o in gb if o[0] != "W"])
        SM(pi - OFF)
        do(gs)
        if nb == 7 and j == 3 and p is not None:
            tr_advance()
        if seg == 0 and gi == OPT["sg1"]:
            S("s_cmp_lg_u32 s3, 0\ns_cbranch_scc1 L_sig1")
            S.wait("vm", "pst", local=True)
            S("s_lshl_b32 s42, s41, 6\ns_add_u32 s42, s42, s40\ns_lshl_b32 s42, s42, 4")
            S(f"v_mov_b32 v128, s56\nv_lshlrev_b32 v129, 20, v{VL}")
            S.mem("vm", f"buffer_store_dword v128, v129, s[{S_T1}:{S_T1+3}], s42 offen sc1", "sig1", opt=True)
            S("L_sig1:")
        if seg == 0 and gi == 27:
            S.wait("vm", ("dma", 1))
            S("s_barrier")
        if seg == 1 and gi == 3:
            S(f"v_xor_b32 v{WA}, 0x10000, v{WA}\nv_xor_b32 v{WB}, 0x10000, v{WB}")
        if seg == 1 and gi == 27:
            S("s_cmp_lg_u32 s3, 1\ns_cbranch_scc1 L_poll1d")
            S(f"s_mov_b32 s42, {OPT['spin']}\ns_lshl_b32 s43, s37, 10")
            S("L_poll1:")
            S(f"buffer_load_dword v50, v{ADV}, s[{S_T1}:{S_T1+3}], s43 offen sc1")
            S("s_waitcnt vmcnt(0)")
            S("v_cmp_eq_u32 vcc, s56, v50")
            S("s_nop 1\ns_cmp_eq_u64 vcc, -1\ns_cbranch_scc1 L_poll1d")
            S("s_sleep 4\ns_sub_u32 s42, s42, 1\ns_cmp_lg_u32 s42, 0\ns_cbranch_scc1 L_poll1")
            S("L_poll1d:")
            S.wait("vm", ("dma", 2))
            S.wait("lg", ("w", 7))
            S("s_barrier")
            for c in range(4): adload(c)
            if OPT["pfa"]:
                S("s_and_b32 s42, s36, 7\ns_mul_i32 s42, s42, 5888\ns_add_u32 s42, s42, s55")
                S(f"v_lshlrev_b32 v50, 7, v{VL}\nv_mov_b32 v51, 0x7ff00000\nv_cmp_gt_u32 vcc, 46, v{VL}")
                S("s_nop 1\nv_cndmask_b32 v50, v51, v50, vcc")
                S.mem("vm", f"buffer_load_dword v0, v50, s[{S_AD}:{S_AD+3}], s42 offen sc1", "pfa")
        if seg >= 3 and gi == 2:
            S.wait("lg", ("w", T))
            S("s_barrier")
        if seg >= 3 and gi == 5:
            if p is not None:
                S.wait("vm", ("dma", p + 1))
            S("s_barrier")
            if p is not None:
                S(f"v_xor_b32 v{WA}, 0x10000, v{WA}\nv_xor_b32 v{WB}, 0x10000, v{WB}")
        if seg == 8:
            if gi == 0: pack(2); pack(3)
            if gi == 3: pnn_consts(); store_setup()
            if gi == 4: pack(4); pack(5)
            if 5 <= gi <= 8: pdma_rb(0, gi - 5)
            if gi == 8: pack(6); pack(7)
            if 9 <= gi <= 13: pstore(gi - 7)
            if gi == 9:
                for I in range(7): ixload(1, I)
    S.mark(("seg", 9))
    stamp(S, 6)
    S("s_branch L_CD3")
    S("L_CD2:")
    S("s_barrier")
    S2 = Stream(); S_save = S.items; S.items = []
    for I in range(4): pdma_rb(0, I)
    re_items = S.items; S.items = S_save
    S("s_waitcnt vmcnt(0)")
    for it in re_items:
        if it[0] in "imo": S(it[1])
    S("L_CD3:")
    S.wait("vm", "wp")
    S("s_barrier")
    stamp(S, 1, 6)
    for I in range(4, 7): pdma_rb(0, I)
    pack(0); pack(1)
    for I in range(4): eread_rb(0, I)
    stamp(S, 2, 6)
    pstore(7); pstore(0); pstore(1)
    stamp(S, 3, 6)
    for I in range(4): refill(1, I)
    stamp(S, 4, 6)
    blocks = [(I, J) for J in range(7) for I in range(J + 1)]
    def packw(w):
        lo = 0
        for i in range(7):
            I, J = blocks[7 * w + i]
            lo |= (I | (J << 3)) << (6 * i)
        return lo
    for w in range(4):
        v = packw(w)
        if w == 0:
            S(f"s_mov_b32 s42, {v & 0xffffffff}\ns_mov_b32 s43, {v >> 32}")
        else:
            S(f"s_cmp_eq_u32 s3, {w}\ns_cselect_b32 s42, {v & 0xffffffff}, s42\ns_cselect_b32 s43, {v >> 32}, s43")
    a1, a2, t0, t1 = 16, 17, 18, 19
    S(f"v_and_b32 v{t0}, 3, v{VL}\nv_mul_u32_u24 v{t0}, 25, v{t0}\nv_bfe_u32 v{t1}, v{VL}, 2, 2\nv_add_u32 v{t0}, v{t0}, v{t1}")
    S(f"v_lshrrev_b32 v{t1}, 4, v{VL}")
    S(f"v_mul_u32_u24 v{a1}, 100, v{t1}\nv_add_lshl_u32 v{a1}, v{a1}, v{t0}, 1")
    S(f"v_mul_u32_u24 v{a2}, 100, v{t0}\nv_add_lshl_u32 v{a2}, v{a2}, v{t1}, 1")
    S(f"v_add_u32 v{a1}, {STG}, v{a1}\nv_add_u32 v{a2}, {STG}, v{a2}")
    S(f"v_and_b32 v{t0}, 15, v{VL}\nv_cmp_gt_u32 s[62:63], 4, v{t0}")
    S(f"s_mul_i32 s44, s3, 7168\ns_add_u32 s44, s44, {WSX}\nv_add_u32 v20, s44, v{ADV}")
    for i in range(7):
        x = 32 + 8 * i
        S("s_and_b32 s38, s42, 7\ns_bfe_u32 s39, s42, 0x30003\ns_lshr_b64 s[42:43], s[42:43], 6")
        S("s_mul_i32 s44, s38, 800\ns_lshl_b32 s52, s39, 3\ns_add_u32 s44, s44, s52")
        S(f"v_add_u32 v{22+2*(i&1)}, s44, v{a1}")
        S("s_mul_i32 s44, s39, 800\ns_lshl_b32 s52, s38, 3\ns_add_u32 s44, s44, s52")
        S("s_cmp_eq_u32 s38, s39\ns_cselect_b32 s44, 0x100000, s44")
        S(f"v_add_u32 v{23+2*(i&1)}, s44, v{a2}")
        for r in range(4):
            S.mem("lg", f"ds_read_u16_d16_hi v{x+r}, v{22+2*(i&1)} offset:{5000*r}", ("wr", i))
            S.mem("lg", f"ds_read_u16_d16_hi v{x+4+r}, v{23+2*(i&1)} offset:{50*r}", ("wr", i))
    for I in range(4, 7): eread_rb(0, I)
    for i in range(7):
        x = 32 + 8 * i
        S.wait("lg", ("wr", i))
        for r in range(4):
            S(f"v_add_f32 v{x+r}, v{x+r}, v{x+4+r}")
        if i == 0:
            S("s_cmp_eq_u32 s3, 3\ns_cselect_b64 s[62:63], s[62:63], -1\ns_cselect_b64 s[38:39], 15, -1")
        m = "s[38:39]" if i == 6 else "s[62:63]"
        for r in range(4):
            S(f"v_cndmask_b32 v{x+r}, 0, v{x+r}, {m}")
        S.mem("lg", f"ds_write_b128 v20, v[{x}:{x+3}] offset:{1024*i}", "wsw")
    stamp(S, 5, 6)
    for I in range(4, 7): refill(1, I)
    for I in range(1): ixload(2, I)
    S.wait("lg", "ALL")
    S("s_barrier")
    stamp(S, 1, 1)
    WS0 = 16
    S.srd(S_W1, P_WS, 4096, WS_FL + 4096)
    S(f"v_add_u32 v0, {WSX}, v{ADV}")
    for k in range(28):
        S.mem("lg", f"ds_read_b128 v[{WS0+4*k}:{WS0+4*k+3}], v0 offset:{1024*k}", ("ws", k))
    DT = [ACC + 8, ACC + 12, ACC + 24, ACC + 28]
    AC = 2
    ACr = [1, 2, 3, 13]
    RES = [14, 0, 6, 6]
    RESr = [14, 0, 12 + 244, 0]

    pend = []

    def fma_ops():
        d, w, first, fin = pend.pop(0)
        ops = []
        for r in range(4):
            ops.append(f"v_mul_f32 v{ACr[r]}, v{d+r}, v{w+r}" if first else f"v_fmac_f32 v{ACr[r]}, v{d+r}, v{w+r}")
        if fin is not None:
            ops.append(f"v_add_f32 v{ACr[0]}, v{ACr[0]}, v{ACr[1]}")
            ops.append(f"v_add_f32 v{ACr[2]}, v{ACr[2]}, v{ACr[3]}")
            ops.append(f"v_add_f32 v{ACr[0]}, v{ACr[0]}, v{ACr[2]}")
            ops.append(f"v_accvgpr_write_b32 a{252+fin}, v{ACr[0]}")
        return ops

    def side_jobs(bi):
        jobs = {k: [] for k in range(28)}
        if bi + 1 < 4:
            for I in range(7):
                for ks in range(4):
                    jobs[4 * I + ks].append(lambda I=I, ks=ks: eread(bi + 1, I, ks))
        for (tb, I) in [(bi + 2, I) for I in range(6)] + [(bi + 1, 6)]:
            if tb > 3 or (I == 6 and bi == 0): continue
            for jj in range(4 if I < 6 else 1):
                k = 4 * I + 5 + jj if I < 6 else 1
                k = min(k, 27)
                def f(tb=tb, I=I, jj=jj):
                    if jj == 0: S.wait("lg", ("er", tb - 1, I))
                    pdma(tb, I, jj)
                jobs[k].append(f)
        for I in range(7):
            tb, k = (bi + 2, 4 * I - 3) if I >= 1 else (bi + 3, 24)
            if tb <= 3:
                jobs[k].append(lambda tb=tb, I=I: ixload(tb, I))
        return jobs

    def final_loads_setup():
        fv = ACC + 64
        pn["FV"] = fv
        S(f"v_and_b32 v{fv}, 7, v{VL}\nv_lshlrev_b32 v{fv}, 4, v{fv}")
        S(f"v_bfe_u32 v{fv+1}, v{VL}, 4, 1\nv_lshl_add_u32 v{fv}, v{fv+1}, 22, v{fv}")
        S(f"v_bfe_u32 v{fv+1}, v{VL}, 3, 1\nv_lshrrev_b32 v{fv+2}, 5, v{VL}\nv_lshl_add_u32 v{fv+1}, v{fv+2}, 1, v{fv+1}")
        S(f"v_lshl_add_u32 v{fv}, v{fv+1}, 18, v{fv}")
        S(f"s_lshl_b32 s44, s3, 8\nv_lshl_add_u32 v{fv+1}, v{fv+1}, 6, s44")
        S.srd(S_T0, P_B1, 1024)
        S.srd(S_T1, P_W2, 1024)
        for i in range(4):
            S.mem("vm", f"buffer_load_dwordx4 v[{ACC+4*i+(8 if i >= 2 else 0)}:{ACC+4*i+3+(8 if i >= 2 else 0)}], v{fv+1}, s[{S_T0}:{S_T0+3}], 0 offen offset:{16*i}", "b1")
            S.mem("vm", f"buffer_load_dwordx4 v[{ACC+32+4*i+(8 if i >= 2 else 0)}:{ACC+35+4*i+(8 if i >= 2 else 0)}], v{fv+1}, s[{S_T1}:{S_T1+3}], 0 offen offset:{16*i}", "b1")

    def poll2():
        f = ACC + 80
        S("s_cmp_lg_u32 s3, 1\ns_cbranch_scc1 L_poll2d")
        S(f"s_mov_b32 s42, {OPT['spin']}")
        S("L_poll2:")
        for i in range(4):
            S(f"buffer_load_dword v{f+i}, v{ADV}, s[{S_W1}:{S_W1+3}], 0 offen offset:{1024*i} sc1")
        S("s_waitcnt vmcnt(0)")
        for i in range(4): S(f"v_xor_b32 v{f+i}, s56, v{f+i}")
        S(f"v_or3_b32 v{f}, v{f}, v{f+1}, v{f+2}\nv_or_b32 v{f}, v{f}, v{f+3}")
        S(f"v_cmp_eq_u32 vcc, 0, v{f}")
        S("s_nop 1\ns_cmp_eq_u64 vcc, -1\ns_cbranch_scc1 L_poll2d")
        S("s_sleep 4\ns_sub_u32 s42, s42, 1\ns_cmp_lg_u32 s42, 0\ns_cbranch_scc1 L_poll2")
        S("L_poll2d:")
        S("s_barrier")

    def fload(t, s):
        if s == 0:
            S(f"s_add_u32 s52, s43, {t * 32768}")
        else:
            S(f"s_add_u32 s52, s52, {2 << 22}")
        a = 8 * t + 4 * s
        S.mem("vm", f"buffer_load_dwordx4 a[{a}:{a+3}], v{pn['FV']}, s[{S_P}:{S_P+3}], s52 offen sc1", ("fl", t))

    dcount = 0
    for bi in range(4):
        jobs = side_jobs(bi)
        stamp(S, 2 + bi, 1)
        for k, (I, J) in enumerate(blocks):
            side = list(jobs[k])
            if bi * 28 + k == OPT["sg2"]:
                def sig2():
                    S.wait("vm", "pstore")
                    S("s_barrier")
                    S("s_or_b32 s44, s3, s61\ns_cmp_lg_u32 s44, 0\ns_cbranch_scc1 L_sig2")
                    S(f"s_lshl_b32 s44, s2, 4\nv_mov_b32 v{ACC+64}, s56\nv_lshlrev_b32 v{ACC+65}, 20, v{VL}")
                    S.mem("vm", f"buffer_store_dword v{ACC+64}, v{ACC+65}, s[{S_W1}:{S_W1+3}], s44 offen sc1", "sig2", opt=True)
                    S("L_sig2:")
                side.append(sig2)
            if bi == 2 and k == 20: side.append(final_loads_setup)
            if bi == 3:
                if k == OPT["pk"]:
                    def pf():
                        poll2()
                        S("s_lshl_b32 s43, s3, 20\ns_lshl_b32 s44, s60, 7\ns_add_u32 s43, s43, s44")
                        S(f"s_mov_b32 s{S_P+2}, {WS_P_SZ}")
                    side.append(pf)
                kk = k - OPT["pk"] - 1
                if 0 <= kk < 8:
                    side.append(lambda kk=kk: fload(kk, 0)); side.append(lambda kk=kk: fload(kk, 1))
            if I == 0:
                S.wait("lg", ("er", bi, J))
            d = DT[dcount % 4]
            dcount += 1
            fm = []
            if len(pend) >= 2:
                if bi == 0 and k >= 2: S.wait("lg", ("ws", k - 2))
                fm = fma_ops()
            for ks in range(4):
                aI, aJ = ereg(bi, I, ks), ereg(bi, J, ks)
                c = "0" if ks == 0 else f"v[{d}:{d+3}]"
                S(f"v_mfma_f32_16x16x32_bf16 v[{d}:{d+3}], a[{aI}:{aI+3}], a[{aJ}:{aJ+3}], {c}")
                n = (len(side) + 3 - ks) // (4 - ks)
                for _ in range(n): side.pop(0)()
                for _ in range((len(fm) + 3 - ks) // (4 - ks)): S(fm.pop(0))
            pend.append((d, WS0 + 4 * k, k == 0, bi if k == 27 else None))
    for o in fma_ops(): S(o)
    stamp(S, 7)
    X, W2 = 16, 48
    S.wait("vm", "b1")

    def breg(base, t, half):
        i = 2 * t + half
        return base + i + (8 if i >= 8 else 0)
    S("s_nop 6")
    for o in fma_ops(): S(o)
    for t in range(8):
        for r in range(4):
            for (base, dst) in ((ACC, X), (ACC + 32, W2)):
                src = breg(base, t, r >> 1)
                S(f"v_and_b32 v{dst+4*t+r}, 0xffff0000, v{src}" if r & 1 else f"v_lshlrev_b32 v{dst+4*t+r}, 16, v{src}")
    R0 = 80
    for i in range(4): S(f"v_accvgpr_read_b32 v{R0+i}, a{252+i}")
    for sh in (1, 2, 4, 8):
        S("s_nop 1")
        for i in range(4):
            S(f"v_add_f32_dpp v{R0+i}, v{R0+i}, v{R0+i} row_ror:{sh} row_mask:0xf bank_mask:0xf")
    S(f"v_lshrrev_b32 v84, 4, v{VL}\nv_lshlrev_b32 v84, 6, v84\ns_lshl_b32 s44, s3, 4\ns_add_u32 s44, s44, {FR+256}\nv_add_u32 v84, s44, v84")
    S.mem("lg", f"ds_write_b128 v84, v[{R0}:{R0+3}]", "lpw")
    c1 = -2 * math.sqrt(2 / math.pi) * math.log2(math.e); c2 = c1 * 0.044715
    S(f"s_mov_b32 s42, {f2h(c2)}\nv_mov_b32 v85, {f2h(c1)}\nv_mov_b32 v86, 0\nv_mov_b32 v87, 0")
    Y = 88
    for t in range(8):
        S.wait("vm", ("fl", t))
        S(f"v_smfmac_f32_16x16x64_bf16 v[{X+4*t}:{X+4*t+3}], v[{SEL}:{SEL+3}], a[{8*t}:{8*t+7}], v{IDX}")
    S("s_nop 7")
    for hh in range(2):
        ks = range(16 * hh, 16 * hh + 16)
        for k in ks: S(f"v_mul_f32 v{Y+k}, v{X+k}, v{X+k}")
        for k in ks: S(f"v_fma_f32 v{Y+k}, v{Y+k}, s42, v85")
        for k in ks: S(f"v_mul_f32 v{Y+k}, v{Y+k}, v{X+k}")
        for k in ks: S(f"v_exp_f32 v{Y+k}, v{Y+k}")
        for k in ks: S(f"v_add_f32 v{Y+k}, 1.0, v{Y+k}")
        for k in ks: S(f"v_rcp_f32 v{Y+k}, v{Y+k}")
        for k in ks: S(f"v_mul_f32 v{X+k}, v{X+k}, v{W2+k}")
        for k in ks: S(f"v_fmac_f32 v{86 + (k & 1)}, v{X+k}, v{Y+k}")
    S("v_add_f32 v86, v86, v87")
    S("s_nop 1")
    S("v_add_f32_dpp v86, v86, v86 row_ror:8 row_mask:0xf bank_mask:0xf")
    S("v_mov_b32 v87, v86")
    S("s_nop 1")
    S("v_permlane32_swap_b32 v86, v87")
    S("v_add_f32 v86, v86, v87")
    S(f"v_and_b32 v84, 7, v{VL}\nv_lshlrev_b32 v84, 3, v84\nv_bfe_u32 v87, v{VL}, 4, 1\nv_lshl_add_u32 v84, v87, 2, v84")
    S(f"s_lshl_b32 s44, s3, 6\ns_add_u32 s44, s44, {FR}\nv_add_u32 v84, s44, v84")
    S.mem("lg", "ds_write_b32 v84, v86", "dw")
    S.srd(S_T0, P_B2, 2)
    S.srd(S_T1, P_OUT, 8192)
    S("v_mov_b32 v87, 0")
    S.mem("vm", f"buffer_load_ushort v89, v87, s[{S_T0}:{S_T0+3}], 0 offen", "b2")
    S.wait("lg", "ALL")
    S("s_barrier")
    S("s_cmp_lg_u32 s3, 0\ns_cbranch_scc1 L_fin")
    S(f"v_and_b32 v84, 15, v{VL}\nv_lshlrev_b32 v85, 2, v84\nv_add_u32 v85, {FR}, v85")
    for k in range(8):
        S(f"ds_read_b32 v{90+k}, v85 offset:{64*k}")
    S("s_waitcnt lgkmcnt(0) vmcnt(0)")
    if OPT["stamp"]:
        S("v_add_f32 v100, v94, v95\nv_add_f32 v101, v96, v97\nv_add_f32 v100, v100, v101")
        S.srd(S_T0, P_WS, 16384, WS_LP)
        S(f"v_lshlrev_b32 v101, 2, v84\nv_lshrrev_b32 v102, 4, v{VL}\nv_lshl_add_u32 v101, v102, 20, v101\ns_lshl_b32 s44, s60, 6")
        S(f"buffer_store_dword v100, v101, s[{S_T0}:{S_T0+3}], s44 offen")
    S("v_lshlrev_b32 v89, 16, v89")
    for k in range(8):
        S(f"v_add_f32 v89, v89, v{90+k}")
    S("v_cvt_pk_bf16_f32 v89, v89, v89")
    S(f"v_lshlrev_b32 v84, 1, v84\nv_lshrrev_b32 v85, 4, v{VL}\nv_lshl_add_u32 v84, v85, 20, v84")
    S("s_lshl_b32 s44, s60, 5")
    S(f"buffer_store_short v89, v84, s[{S_T1}:{S_T1+3}], s44 offen")
    S("L_fin:")
    if OPT["stamp"]:
        S("s_memrealtime s[100:101]")
        S("s_waitcnt lgkmcnt(0)")
        S.srd(S_T0, P_WS, 0x20000, WS_ST)
        S("s_lshl_b32 s44, s2, 2\ns_add_u32 s44, s44, s3\ns_lshl_b32 s44, s44, 6")
        S("s_mov_b64 exec, 1\nv_mov_b32 v0, s44")
        for k in range(9): S(f"v_mov_b32 v{16+k}, s{84+2*k}")
        for k in range(3):
            S(f"buffer_store_dwordx4 v[{16+4*k}:{19+4*k}], v0, s[{S_T0}:{S_T0+3}], 0 offen offset:{16*k}")
    S("L_END:\ns_endpgm\nL_CODE_END:")

    items = S.resolve()
    segs = {}
    cur = -1
    for it in items:
        if isinstance(it, tuple) and it[0] == "mark":
            cur = it[1][1]
            continue
        segs.setdefault(cur, []).append(it)
    import re
    norm = lambda x: re.sub(r"_@\d+", "_lp", x)
    body = []
    n = len(segs[3])
    for sg in range(4, 8):
        assert len(segs[sg]) == n, (sg, len(segs[sg]), n)
    for i in range(n):
        its = [segs[sg][i] for sg in range(3, 8)]
        if isinstance(its[0], tuple):
            assert all(x[0] == "wait" and x[1] == its[0][1] for x in its)
            vals = [x[2] for x in its if x[2] is not None]
            body.append(("wait", its[0][1], min(vals) if vals else None))
        else:
            assert all(norm(x) == norm(its[0]) for x in its), its
            body.append(norm(its[0]))
    out = []
    for sg in (-1, 0, 1, 2): out += flat(segs[sg])
    out += ["s_mov_b32 s38, 5", "s_mov_b32 s60, s2", "s_mov_b32 s61, 0"] + (["s_memrealtime s[94:95]"] if OPT["stamp"] and OPT["sm"] == 0 else []) + [".p2align 6", "L_LOOP:"]
    out += flat(body)
    out += ["s_sub_u32 s38, s38, 1", "s_cmp_lg_u32 s38, 0", "s_cbranch_scc1 L_LOOP"]
    def keep(x):
        if OPT["nost"] and x.startswith("buffer_store_dwordx4") and "sc1" in x: return False
        if OPT["nopd"] and x.endswith(" lds") and "s[8:11]" in x: return False
        if OPT["nofma"] and x.startswith("v_fmac_f32"): return False
        if OPT["noer"] and x.startswith("ds_read_b128 a["): return False
        return True
    for sg in (8, 9): out += [x for x in flat(segs[sg]) if keep(x)]
    txt = "\n".join(out).replace("_@", "_")
    txt = txt.replace("@CODESZ", "32768")
    return txt


def main():
    print("; generated by dev/gen3.py - deep_cross_pnn recsys, single fused kernel")
    print(f"; @launch grid=(256,1,1) block=(256,1,1) lds={LDS_SZ}")
    print('.amdgcn_target "amdgcn-amd-amdhsa--gfx950"\n.text')
    print(gen())
    print(f""".section .rodata,"a"
.p2align 6
.amdhsa_kernel {NAME}
  .amdhsa_next_free_vgpr 512
  .amdhsa_next_free_sgpr 102
  .amdhsa_accum_offset 256
  .amdhsa_group_segment_fixed_size 0
  .amdhsa_kernarg_size 80
  .amdhsa_user_sgpr_count 2
  .amdhsa_user_sgpr_kernarg_segment_ptr 1
  .amdhsa_system_sgpr_workgroup_id_x 1
  .amdhsa_float_denorm_mode_32 3
.end_amdhsa_kernel""")


main()
```

```python
import sys, struct, math, re

OPT = dict(stamp=0, sm=0, spin=4000, pfc=1, pfa=1, pfw=20, w2=6, sg1=5, sg2=30, pk=0, lat=10, clk=0)
for a in sys.argv[1:]:
    k, v = a.split("=")
    OPT[k] = int(v)

NAME = "standalone__deep_cross_pnn__recsys_kernel"

WS_ADDR = 0
WS_ADDR_SZ = 16 * 50 * 1024
WS_FL = 0x100000
WS_WS = 0x110000
WS_LP = 0x140000
WS_ST = 0x180000
WS_P = 0x200000
WS_P_SZ = 4 * 128 * 4096 * 8

TB1 = 65536
STG = 131072
STGSZ = 8448
GO = 156672
GT = GO + 3584
FR = GT + 2048
LDS_SZ = 163840

WA, WB, TRA, DMAV, ADV, VW, VL = 1, 2, 3, 4, 5, 6, 7
SEL, IDX, UA, TRB = 8, 12, 13, 15
AD, G, D, AF, ACC = 16, 32, 64, 96, 128
S_IDX, S_TAB, S_W1, S_AD, S_P, S_DBG, S_T0, S_T1 = 4, 8, 12, 16, 20, 24, 28, 32
P_IDX, P_TAB, P_WP, P_W1, P_B1, P_W2, P_B2, P_OUT, P_DBG, P_WS = 64, 66, 68, 70, 72, 74, 76, 78, 80, 82
BLOCKS = [(I, J) for J in range(7) for I in range(J + 1)]


def f2h(x):
    return "0x%08x" % struct.unpack("<I", struct.pack("<f", x))[0]


def srdt(s):
    return f"s[{s}:{s+3}]"


class Stream:
    def __init__(self):
        self.items = []
        self.nlab = 0

    def i(self, text):
        for ln in text.split("\n"):
            self.items.append(("i", ln, None, None))

    __call__ = i

    def mem(self, cls, text, tag=None, opt=False):
        self.items.append(("o" if opt else "m", text, cls, tag))

    def wait(self, cls, tag, local=False):
        self.items.append(("l" if local else "w", None, cls, tag))

    def mark(self, name):
        self.items.append(("k", name, None, None))

    def srd(self, d, base, size, off=0):
        if off:
            self.i(f"s_add_u32 s{d}, s{base}, {off}\ns_addc_u32 s{d+1}, s{base+1}, 0")
        else:
            self.i(f"s_mov_b32 s{d}, s{base}\ns_mov_b32 s{d+1}, s{base+1}")
        self.i(f"s_mov_b32 s{d+2}, {size}\ns_mov_b32 s{d+3}, 0x20000")

    def resolve(self):
        out = []
        issued = {"vm": [], "lg": []}
        done = {"vm": 0, "lg": 0}
        for kind, text, cls, tag in self.items:
            if kind == "i":
                out.append(text)
            elif kind == "k":
                out.append(("mark", text))
            elif kind in "mo":
                issued[cls].append((tag, kind == "o"))
                out.append(text)
            else:
                q = issued[cls]
                if tag == "ALL":
                    pos = len(q) - 1
                else:
                    idxs = [i for i, t in enumerate(q) if t[0] == tag]
                    assert idxs, f"wait for unknown tag {tag}"
                    pos = idxs[-1]
                n = sum(1 for t in q[pos + 1:] if not t[1])
                lim = 62 if cls == "vm" else 14
                if pos + 1 <= done[cls]:
                    out.append(("wait", cls, None))
                else:
                    out.append(("wait", cls, min(n, lim)))
                    if kind == "w": done[cls] = pos + 1
        return out


def flat(items):
    out = []
    for it in items:
        if isinstance(it, tuple):
            if it[0] == "wait" and it[2] is not None:
                out.append(f"s_waitcnt {'vmcnt' if it[1] == 'vm' else 'lgkmcnt'}({it[2]})")
        elif it:
            out.append(it)
    return out


def gen():
    S = Stream()

    def stamp(k, mode=0):
        if OPT["stamp"] and (k in (0, 6, 7) or OPT["sm"] == mode):
            S(f"s_memrealtime s[{84+2*k}:{85+2*k}]")

    def dstamp(k, mode):
        if OPT["stamp"] and OPT["sm"] == mode:
            S(f"s_waitcnt vmcnt(0)\ns_memrealtime s[{84+2*k}:{85+2*k}]")

    GA = 128
    F, F6, TB, PSEL, OB0, OB1, LUT, C257, T, K, M1, M2, TA = 146, 147, 149, 150, 151, 152, 153, 154, 155, 156, 157, 158, 160

    def prep_loads():
        S("s_mul_i32 s42, s41, 96")
        S(f"v_and_b32 v148, 31, v{VL}")
        S(f"v_lshl_add_u32 v144, v148, 2, s42")
        S(f"v_lshlrev_b32 v145, 2, v148\nv_add_u32 v145, 384-96, v145")
        S(f"v_cmp_gt_u32 vcc, 24, v148")
        S("s_lshl_b32 s43, s3, 5\ns_lshl_b32 s42, s40, 6\ns_add_u32 s43, s43, s42\ns_mul_i32 s43, s43, 400")
        S("v_cndmask_b32 v144, v145, v144, vcc")
        S(f"v_lshrrev_b32 v145, 5, v{VL}\nv_mul_u32_u24 v145, 400, v145\nv_add_u32 v144, v144, v145")
        S(f"v_mov_b32 v145, 0x7ffffff0\nv_cmp_gt_u32 vcc, 28, v148")
        S("s_nop 1\nv_cndmask_b32 v144, v145, v144, vcc")
        for n in range(16):
            if n % 4 == 0 and n: S("s_add_u32 s43, s43, 3200")
            S.mem("vm", f"buffer_load_dword v{GA+n}, v144, {srdt(S_IDX)}, s43 offen offset:{(n % 4) * 800}", "prep")

    def greedy_consts():
        S(f"v_and_b32 v{F}, 3, v{VL}")
        S(f"v_lshlrev_b32 v{F6}, 6, v{F}")
        S(f"v_lshrrev_b32 v{T}, 2, v{VL}")
        S(f"v_cmp_gt_u32 vcc, 28, v148\nv_mov_b32 v{K}, 0x4000")
        S(f"s_lshl_b32 s42, s3, 10\ns_add_u32 s42, s42, {GT}")
        S(f"v_cndmask_b32 v{T}, v{K}, v{T}, vcc")
        S(f"v_lshl_add_u32 v{TB}, v{T}, 6, s42")
        S(f"v_add_u32 v{K}, s42, v{ADV}\nv_mov_b64 v[{TA}:{TA+1}], 0\nv_mov_b64 v[{TA+2}:{TA+3}], 0")
        S.mem("lg", f"ds_write_b128 v{K}, v[{TA}:{TA+3}]", "gz")
        S(f"v_mul_u32_u24 v{PSEL}, 0x010101, v{F}\nv_lshl_or_b32 v{PSEL}, v{F}, 24, v{PSEL}\nv_xor_b32 v{PSEL}, 0x03020100, v{PSEL}")
        S(f"s_lshl_b32 s42, s3, 3\ns_add_u32 s42, s42, {GO}")
        S(f"v_and_b32 v{T}, 0x4007, v{T}\nv_lshl_add_u32 v{OB0}, v{T}, 9, s42")
        S(f"v_lshrrev_b32 v{T}, 5, v{VL}\nv_lshl_add_u32 v{OB0}, v{T}, 2, v{OB0}")
        S(f"v_xor_b32 v{OB1}, 0x100, v{OB0}")
        S(f"s_mov_b32 s62, 0x24100400\ns_mov_b32 s63, 0x102\nv_mov_b32 v{LUT}, 0x3c3c3c3c\nv_mov_b32 v{C257}, 0x101")

    TAB = 176
    KK = [156, 164]

    def ga(n):
        r = GA + n
        if n == 0: S.wait("vm", "prep"); stamp(3, 2)
        S(f"v_and_b32 v{T}, 7, v{r}")
        S(f"v_lshrrev_b32 v{r}, 2, v{r}")
        S(f"v_lshlrev_b32 v{T}, 4, v{T}")
        S(f"v_xor_b32 v{T}, v{T}, v{F6}")
        S(f"v_lshl_add_u32 v{r}, v{r}, 8, v{T}")
        S(f"v_lshrrev_b32 v{T}, 2, v{T}")
        S(f"v_add_u32 v{TAB + n}, v{T}, v{TB}")

    def g_read(n):
        S.mem("lg", f"ds_read_b32 v{KK[n & 1]}, v{TAB + n}", ("gr", n))

    def g_chain(n):
        k = KK[n & 1]; m1, m2 = k + 1, k + 2
        tie = 0x03020100 if (n & 1) == 0 else 0x02030001
        L = [f"v_perm_b32 v{k}, v{LUT}, s62, v{k}",
             f"v_perm_b32 v{k}, v{k}, v{k}, v{PSEL}",
             "s_nop 0",
             f"v_add_u32_dpp v{k}, v{k}, v{k} quad_perm:[1,0,3,2] row_mask:0xf bank_mask:0xf",
             "s_nop 0",
             f"v_add_u32_dpp v{k}, v{k}, v{k} quad_perm:[2,3,0,1] row_mask:0xf bank_mask:0xf",
             f"v_add_u32 v{k}, {tie}, v{k}",
             f"v_min_u32_sdwa v{m1}, v{k}, v{k} dst_sel:DWORD dst_unused:UNUSED_PAD src0_sel:BYTE_0 src1_sel:BYTE_1",
             f"v_min_u32_sdwa v{m2}, v{k}, v{k} dst_sel:DWORD dst_unused:UNUSED_PAD src0_sel:BYTE_2 src1_sel:BYTE_3",
             f"v_min_u32 v{m1}, v{m1}, v{m2}",
             f"v_bitop3_b32 v{m1}, v{m1}, 3, v{F + 21 * (n & 1)} bitop3:0x6a"]
        return L

    def g_upd(n):
        k = KK[n & 1]; m1, m2 = k + 1, k + 2
        S(f"v_lshlrev_b32 v{m2}, 3, v{m1}")
        S(f"v_lshlrev_b32 v{m2}, v{m2}, 1")
        S.mem("lg", f"ds_add_u32 v{TAB + n}, v{m2}", "gadd")

    def g_out(n):
        k = KK[n & 1]; m1 = k + 1
        S(f"v_mul_u32_u24 v{m1}, v{m1}, v{C257}")
        mid = 1 if 4 <= n <= 11 else 0
        S(f"v_bitop3_b32 v{m1}, v{m1}, s63, v{OB0 + mid} bitop3:0x6a")
        S.mem("lg", f"ds_write_b16 v{m1}, v{GA+n} offset:{16*n}", "gw")

    def greedy():
        S(f"v_xor_b32 v{F+21}, 1, v{F}")
        for n in range(4):
            ga(n)
            S(f"v_xor_b32 v{KK[n & 1]+1}, {n}, v{F}")
            g_upd(n); g_out(n)
        ga(4); ga(5)
        for n in range(4, 16, 2):
            g_read(n); g_read(n + 1)
            if n >= 6: g_out(n - 2); g_out(n - 1)
            if n + 2 < 16: ga(n + 2); ga(n + 3)
            S.wait("lg", ("gr", n + 1))
            for x, y in zip(g_chain(n), g_chain(n + 1)):
                S(x)
                if not x.startswith("s_nop"): S(y)
            g_upd(n); g_upd(n + 1)
        g_out(14); g_out(15)
        S.wait("lg", "ALL")

    def prep_store(lab):
        S(f"s_cmp_lg_u32 s3, 0\ns_cbranch_scc1 {lab}")
        S(f"v_add_u32 v144, {GO}, v{ADV}")
        for i in range(4):
            S.mem("lg", f"ds_read_b128 v[{128+4*i}:{131+4*i}], v144 offset:{1024*i}", "go", opt=True)
        S("s_lshr_b32 s42, s40, 4\ns_lshl_b32 s43, s41, 2\ns_add_u32 s42, s42, s43\ns_mul_i32 s42, s42, 50")
        S("s_lshr_b32 s43, s40, 1\ns_lshl_b32 s44, s41, 1\ns_sub_u32 s43, s43, s44\ns_sub_u32 s43, s43, 2\ns_and_b32 s43, s43, 7")
        S("s_add_u32 s42, s42, s43\ns_lshl_b32 s42, s42, 10")
        S("s_and_b32 s44, s40, 1\ns_lshl_b32 s44, s44, 9\ns_add_u32 s42, s42, s44")
        S(f"v_and_b32 v145, 31, v{VL}\nv_lshlrev_b32 v145, 4, v145")
        S(f"v_lshrrev_b32 v146, 5, v{VL}\nv_lshl_add_u32 v145, v146, 13, v145")
        S("s_cmp_ge_u32 s43, 6\ns_cselect_b32 s44, 32, 0")
        S(f"v_cmp_gt_u32 vcc, s44, v{VL}\nv_mov_b32 v146, 0x7ffffff0")
        S("s_waitcnt lgkmcnt(0)")
        S("v_cndmask_b32 v146, v146, v145, vcc")
        for i in range(4):
            S.mem("vm", f"buffer_store_dwordx4 v[{128+4*i}:{131+4*i}], v{146 if i == 3 else 145}, {srdt(S_AD)}, s42 offen sc1", "pst", opt=True)
            if i < 3: S(f"s_add_u32 s42, s42, {16384 if i < 2 else 16384 - 6144}")
        S(f"{lab}:")

    def ws_loads(lab):
        S(f"s_cmp_lt_u32 s40, 28\ns_cselect_b32 s44, s3, 0\ns_cmp_eq_u32 s44, 2\ns_cbranch_scc0 {lab}")
        S("s_mov_b32 s43, 0")
        for J in range(1, 7):
            S(f"s_cmp_ge_u32 s40, {J*(J+1)//2}\ns_cselect_b32 s43, {J}, s43")
        S("s_add_u32 s42, s43, 1\ns_mul_i32 s42, s42, s43\ns_lshr_b32 s42, s42, 1\ns_sub_u32 s42, s40, s42")
        S(f"v_and_b32 v24, 3, v{VL}\nv_mul_u32_u24 v24, 25, v24\nv_bfe_u32 v25, v{VL}, 2, 2\nv_add_u32 v24, v24, v25")
        S(f"v_lshl_add_u32 v24, s43, 2, v24")
        S(f"v_lshrrev_b32 v26, 4, v{VL}\nv_lshl_add_u32 v26, s42, 2, v26")
        S(f"v_lshl_add_u32 v25, s43, 2, v25")
        S("v_max_u32 v25, v25, v26\nv_cmp_gt_u32 vcc, 25, v25")
        S("v_mul_u32_u24 v25, 100, v26\nv_add_lshl_u32 v25, v25, v24, 1")
        S("v_mul_u32_u24 v27, 100, v24\nv_add_lshl_u32 v27, v27, v26, 1")
        S("v_mov_b32 v24, 0x7ff00000\nv_cndmask_b32 v25, v24, v25, vcc\nv_cndmask_b32 v27, v24, v27, vcc")
        S("s_cmp_eq_u32 s42, s43\ns_cselect_b32 s44, 0x100000, 0")
        S.srd(S_T0, P_WP, 20000)
        for r in range(4):
            S(f"s_mov_b32 s43, {5000*r}")
            S.mem("vm", f"buffer_load_ushort v{16+r}, v25, {srdt(S_T0)}, s43 offen", "wsl", opt=True)
            S.mem("vm", f"buffer_load_ushort v{20+r}, v27, {srdt(S_T0)}, s44 offen offset:{50*r}", "wsl", opt=True)
        S(f"{lab}:")

    def ws_store(lab):
        S(f"s_cmp_lt_u32 s40, 28\ns_cselect_b32 s44, s3, 0\ns_cmp_eq_u32 s44, 2\ns_cbranch_scc0 {lab}")
        S.wait("vm", "wsl", local=True)
        for r in range(8): S(f"v_lshlrev_b32 v{16+r}, 16, v{16+r}")
        for r in range(4): S(f"v_add_f32 v{16+r}, v{16+r}, v{20+r}")
        S.srd(S_T0, P_WS, 4 * 32768, WS_WS)
        S("s_lshl_b32 s44, s41, 15\ns_lshl_b32 s43, s40, 10\ns_add_u32 s44, s44, s43")
        S.mem("vm", f"buffer_store_dwordx4 v[16:19], v{ADV}, {srdt(S_T0)}, s44 offen sc1", "wss", opt=True)
        S(f"{lab}:")

    def ws_sig(lab):
        S(f"s_cmp_lg_u32 s3, 2\ns_cbranch_scc1 {lab}")
        S.wait("vm", "wss", local=True)
        S("s_lshl_b32 s42, s41, 6\ns_add_u32 s42, s42, s40\ns_lshl_b32 s42, s42, 4")
        S(f"v_mov_b32 v{D}, s56\nv_lshlrev_b32 v{D+1}, 20, v{VL}")
        S.mem("vm", f"buffer_store_dword v{D}, v{D+1}, {srdt(S_T1)}, s42 offen offset:4 sc1", "sigw", opt=True)
        S(f"{lab}:")

    S(f".globl {NAME}\n.p2align 8\n.type {NAME},@function\n{NAME}:")
    S("s_cmp_ge_u32 s2, 256\ns_cbranch_scc1 L_END")
    stamp(0)
    S("s_load_dwordx16 s[64:79], s[0:1], 0")
    S("s_load_dwordx4 s[80:83], s[0:1], 64")
    S(f"v_lshrrev_b32 v{VW}, 6, v0")
    S(f"v_and_b32 v{VL}, 63, v0")
    S(f"v_readfirstlane_b32 s3, v{VW}")
    S("s_and_b32 s36, s2, 7\ns_lshl_b32 s36, s36, 3\ns_bfe_u32 s37, s2, 0x30003\ns_add_u32 s36, s36, s37")
    S("s_lshr_b32 s37, s2, 6")
    S("s_lshr_b32 s40, s2, 2\ns_and_b32 s41, s2, 3")
    S(f"v_lshlrev_b32 v{ADV}, 4, v{VL}")
    S("s_lshl_b32 s38, s36, 4\ns_lshl_b32 s39, s3, 17\ns_add_u32 s38, s38, s39")
    S(f"v_lshl_add_u32 v{DMAV}, v{VL}, 10, s38")
    S("s_mul_i32 s45, s37, 24*131072")
    S("s_add_u32 s46, s45, 24*131072")
    S(f"s_mul_i32 s47, s3, 2112\ns_add_u32 s47, s47, {STG}")
    S(f"s_add_u32 s48, s47, {3*STGSZ}")
    S("s_mov_b32 s49, s3")
    S(f"v_and_b32 v44, 15, v{VL}\nv_lshrrev_b32 v45, 4, v{VL}")
    for jj in range(4):
        S(f"v_add_u32 v{40+jj}, {4*jj}, v45\nv_xor_b32 v{40+jj}, v{40+jj}, v44\nv_lshlrev_b32 v{40+jj}, 4, v{40+jj}")
        S(f"v_lshl_add_u32 v{40+jj}, v45, 8, v{40+jj}")
    S("s_lshl_b32 s50, s3, 16")
    S("s_lshl_b32 s51, s3, 14")
    S(f"v_lshlrev_b32 v46, 7, v{VL}")
    S("s_waitcnt lgkmcnt(0)")

    def srds():
        S.srd(S_TAB, P_TAB, 256000)
        S.srd(S_W1, P_W1, 12800 * 1024)
        S.srd(S_DBG, P_DBG, 256)

    def pft():
        S(f"v_mov_b32 v49, 0x7ff00000\nv_cmp_gt_u32 vcc, 32, v{VL}")
        S("s_lshr_b32 s44, s2, 3\ns_lshl_b32 s44, s44, 13\ns_and_b32 s52, s3, 1\ns_lshl_b32 s52, s52, 12\ns_add_u32 s44, s44, s52")
        S("v_cndmask_b32 v48, v49, v46, vcc")
        S.mem("vm", f"buffer_load_dword v47, v48, {srdt(S_TAB)}, s44 offen", "pft")

    def pfw(ph):
        S("s_and_b32 s52, s36, 7\ns_lshl_b32 s52, s52, 16\ns_lshl_b32 s44, s36, 4\ns_add_u32 s52, s52, s44")
        if ph == 0:
            S(f"v_and_b32 v48, 31, v{VL}\nv_lshlrev_b32 v48, 10, v48\nv_lshrrev_b32 v49, 5, v{VL}\nv_lshl_add_u32 v48, v49, 19, v48")
            S("s_and_b32 s44, s3, 1\ns_lshl_b32 s44, s44, 15\ns_add_u32 s52, s52, s44\ns_add_u32 s52, s52, s45")
            S.mem("vm", f"buffer_load_dword v47, v48, {srdt(S_W1)}, s52 offen", "pfw")
        else:
            S(f"v_lshlrev_b32 v0, 10, v44\nv_lshl_add_u32 v0, v45, 19, v0\nv_mov_b32 v49, 0x7ff00000\nv_cmp_gt_u32 vcc, 48, v{VL}\ns_nop 1\nv_cndmask_b32 v0, v49, v0, vcc")
            S("s_lshl_b32 s44, s3, 14\ns_add_u32 s52, s52, s44")
            if ph < 6:
                S(f"s_mul_i32 s44, s37, 24*131072\ns_add_u32 s52, s52, s44\ns_add_u32 s52, s52, {ph*4*131072}")
            else:
                S("s_add_u32 s52, s52, 96*131072")
            S.mem("vm", f"buffer_load_dword v{VW}, v0, {srdt(S_W1)}, s52 offen", "pfw")

    def misc_loads():
        if OPT["pfc"]:
            S(f"s_getpc_b64 s[{S_T0}:{S_T0+1}]\nL_PC:\ns_mov_b32 s{S_T0+2}, L_CODE_END-L_PC\ns_mov_b32 s{S_T0+3}, 0x20000")
            S(f"v_mov_b32 v49, 0x7ff00000\nv_cmp_gt_u32 vcc, 5, v{VL}")
            S("s_lshr_b32 s44, s2, 3\ns_lshl_b32 s44, s44, 1\ns_add_u32 s44, s44, s3\ns_mul_i32 s44, s44, 640")
            S("v_cndmask_b32 v48, v49, v46, vcc")
            S.mem("vm", f"buffer_load_dword v47, v48, {srdt(S_T0)}, s44 offen", "pfc")
        S("s_cmp_lt_u32 s2, 8\ns_cselect_b32 s44, s3, 0\ns_cmp_eq_u32 s44, 1\ns_cbranch_scc0 L_nn")
        S("s_memrealtime s[42:43]\ns_waitcnt lgkmcnt(0)\ns_or_b32 s42, s42, 1")
        S(f"v_mov_b32 v48, s42\nv_mov_b32 v49, 0\nv_lshlrev_b32 v50, 20, v{VL}")
        S.mem("vm", f"buffer_atomic_cmpswap v[48:49], v50, {srdt(S_DBG)}, 0 offen sc1", "nn", opt=True)
        S("L_nn:")

    def pfi():
        S(f"v_cmp_gt_u32 vcc, 14, v{VL}\ns_lshl_b32 s44, s2, 2\ns_add_u32 s44, s44, s3\ns_mul_i32 s44, s44, 1600")
        S("v_mov_b32 v49, 0x7ff00000\nv_cndmask_b32 v48, v49, v46, vcc")
        S.mem("vm", f"buffer_load_dword v47, v48, {srdt(S_IDX)}, s44 offen", "pfi")

    def wdma(half, tag, opt=False):
        if half == 0:
            S("s_mov_b32 m0, s47\ns_nop 0")
            S.mem("vm", f"buffer_load_dwordx4 v{DMAV}, {srdt(S_W1)}, s45 offen lds", tag, opt)
        else:
            S("s_add_u32 m0, s47, 1024\ns_add_u32 s44, s45, 65536")
            S.mem("vm", f"buffer_load_dwordx4 v{DMAV}, {srdt(S_W1)}, s44 offen lds", tag, opt)

    def wdma_adv():
        S(f"s_add_u32 s47, s47, {STGSZ}")
        S("s_cmp_eq_u32 s47, s48")
        S(f"s_cselect_b32 s44, {3*STGSZ}, 0\ns_sub_u32 s47, s47, s44")
        S("s_add_u32 s45, s45, 4*131072")
        S("s_cmp_eq_u32 s45, 100*131072\ns_cselect_b32 s49, 0xff, s49")
        S("s_cmp_eq_u32 s45, s46\ns_cselect_b32 s45, 96*131072, s45")

    def wsite(k, tag):
        S.nlab += 1
        lab = f"L_ws{k}_@{S.nlab}"
        S(f"s_cmp_eq_u32 s49, {k & 3}\ns_cbranch_scc0 {lab}")
        wdma(k >> 2, tag, True)
        S(f"{lab}:")

    TSL = [0, 8192, TB1, TB1 + 8192, 8192, TB1, TB1 + 8192, TB1]

    def tdma(nb, j):
        if j % 2 == 0:
            S(f"s_add_u32 m0, s51, {TSL[nb] + (j & ~3) * 1024}")
            S(f"s_add_u32 s52, s50, {(nb * 8 + (j & ~3)) * 1024}")
        S.mem("vm", f"buffer_load_dwordx4 v{40 + (j & 3)}, {srdt(S_TAB)}, s52 offen offset:{(j & 3) * 1024} lds", ("td", nb))

    def consts():
        S.srd(S_AD, P_WS, WS_ADDR_SZ, WS_ADDR)
        S.srd(S_P, P_WS, WS_P_SZ, WS_P)
        S.srd(S_T1, P_WS, 8192, WS_FL)
        S(f"v_and_b32 v13, 31, v{VL}\nv_lshrrev_b32 v14, 2, v13\nv_and_b32 v13, 3, v13")
        S("v_lshlrev_b32 v13, 4, v13\nv_lshl_add_u32 v13, v14, 8, v13")
        S(f"v_lshrrev_b32 v15, 5, v{VL}\nv_lshl_add_u32 v13, v15, 7, v13")
        S(f"v_lshl_add_u32 v13, v{VW}, 14, v13")
        S("v_and_b32 v14, 1, v14")
        S(f"v_lshl_add_u32 v{WA}, v14, 6, v13")
        S(f"v_xor_b32 v{WB}, 64, v{WA}")
        S(f"v_xor_b32 v13, v44, v15\nv_lshlrev_b32 v13, 4, v13\nv_and_b32 v14, 31, v{VL}\nv_lshl_add_u32 v13, v14, 8, v13")
        S(f"v_lshl_add_u32 v32, v{VW}, 14, v13")
        for ks in range(1, 8):
            S(f"v_xor_b32 v{32+ks}, {32*ks}, v32")
        for ks in range(8):
            S(f"v_xor_b32 v{56+ks}, 0x10000, v{32+ks}")
        S(f"v_and_b32 v13, 1, v{VL}\nv_bfe_u32 v14, v{VL}, 4, 1\nv_lshl_add_u32 v13, v13, 1, v14")
        S("v_mul_u32_u24 v13, 2112, v13")
        S(f"v_bfe_u32 v14, v{VL}, 2, 2\nv_lshl_add_u32 v14, v15, 3, v14\nv_lshl_add_u32 v13, v14, 4, v13")
        S(f"v_bfe_u32 v14, v{VL}, 1, 1\nv_lshl_add_u32 v13, v14, 3, v13")
        S(f"v_add_u32 v{TRA}, {STG}, v13")
        S(f"v_mov_b32 v{TRB}, v{TRA}")
        S(f"v_bfe_u32 v13, v{VL}, 4, 1\nv_bfe_u32 v14, v{VL}, 3, 1\nv_cmp_eq_u32 vcc, v13, v14")
        S(f"v_mov_b32 v13, 0x3f80\nv_bfe_u32 v14, v{VL}, 2, 1")
        S("v_cndmask_b32 v13, 0, v13, vcc")
        S("v_cmp_eq_u32 vcc, 0, v14")
        S("s_nop 1")
        S(f"v_cndmask_b32 v{SEL}, 0, v13, vcc")
        S(f"v_xor_b32 v{SEL+1}, v{SEL}, v13")
        S(f"v_mov_b32 v{SEL+2}, v{SEL}\nv_mov_b32 v{SEL+3}, v{SEL+1}")
        S(f"v_and_b32 v13, 3, v{VL}")
        S(f"v_mul_u32_u24 v{IDX}, 0x5555, v13")
        S("s_mov_b32 s53, 0x10000\ns_mov_b32 s54, 0")
        S("s_lshl_b32 s55, s37, 2\ns_add_u32 s55, s55, s3\ns_mul_i32 s55, s55, 51200")
        S("s_mov_b32 s60, s2\ns_mov_b32 s61, 0\nv_mov_b32 v50, 0")

    main_items = S.items
    S.items = []
    S.srd(S_IDX, P_IDX, 4096 * 400)
    prep_loads()
    stamp(4, 2)
    srds()
    misc_loads()
    consts()
    greedy_consts()
    stamp(1); stamp(5, 2)
    greedy()
    stamp(1, 2)
    S(f"buffer_load_dword v51, v50, {srdt(S_DBG)}, 0 offen sc1")
    for j in range(8): tdma(1, j)
    stamp(2, 2)
    g_code = flat(S.resolve())
    S.items = []
    srds()
    S.srd(S_IDX, P_IDX, 4096 * 400)
    consts()
    pft(); pfw(0)
    S("s_sub_u32 s50, s50, 0x20000\ns_sub_u32 s51, s51, 0x8000\ns_sub_u32 s47, s47, 4224\ns_mov_b32 s39, 2")
    S(f"v_subrev_u32 v{DMAV}, 0x40000, v{DMAV}")
    stamp(3, 2)
    S("L_ld:")
    for j in range(8): tdma(0, j)
    wdma(0, None); wdma(1, None)
    S("s_add_u32 s50, s50, 0x20000\ns_add_u32 s51, s51, 0x8000\ns_add_u32 s47, s47, 4224")
    S(f"v_add_u32 v{DMAV}, 0x40000, v{DMAV}")
    S("s_sub_u32 s39, s39, 1\ns_cmp_lg_u32 s39, 0\ns_cbranch_scc1 L_ld")
    S("s_sub_u32 s50, s50, 0x20000\ns_sub_u32 s51, s51, 0x8000\ns_sub_u32 s47, s47, 4224")
    S(f"v_subrev_u32 v{DMAV}, 0x40000, v{DMAV}")
    stamp(1); stamp(4, 2)
    S(f"buffer_load_dword v51, v50, {srdt(S_DBG)}, 0 offen sc1")
    for j in range(8): tdma(1, j)
    stamp(1, 2)
    S("s_waitcnt vmcnt(9)")
    stamp(2, 2)
    l_code = flat(S.resolve())
    S.items = main_items
    S("s_cmp_ge_u32 s3, 2\ns_cbranch_scc1 L_loader")
    for x in g_code: S(x)
    S("s_branch L_join\nL_loader:")
    for x in l_code: S(x)
    S("L_join:")
    S.mem("vm", "", "nld")
    for j in range(8): S.mem("vm", "", ("td", 1))
    wdma_adv()
    S("s_barrier")
    stamp(2)

    def adload(c):
        r = AD + (c & 3) * 4
        S.mem("vm", f"buffer_load_dwordx4 v[{r}:{r+3}], v{ADV}, {srdt(S_AD)}, s55 offen offset:{(c & 3) * 1024} sc1", ("ad", c))
        if (c & 3) == 3:
            S("s_add_u32 s55, s55, 4096")

    def trread(ks, half, tag):
        r = AF + ks * 4 + half * 2
        S.mem("lg", f"ds_read_b64_tr_b16 v[{r}:{r+1}], v{TRA} offset:{ks*256 + half*64}", tag)

    def tr_advance():
        S(f"s_add_u32 s54, s54, {STGSZ}")
        S(f"s_cmp_eq_u32 s54, {3*STGSZ}")
        S("s_cselect_b32 s54, 0, s54")
        S(f"v_add_u32 v{TRA}, s54, v{TRB}")

    def tread(nb, ks):
        if ks == 0 and nb >= 1:
            S.wait("vm", ("td", nb))
        k = nb * 8 + ks
        S.mem("lg", f"ds_read_b128 a[{4*k}:{4*k+3}], v{(56 if TSL[nb] >= TB1 else 32)+ks} offset:{TSL[nb] & 0xffff}", ("tr", nb, ks))

    for ks in range(8):
        for h in range(2): trread(ks, h, ("af", 0, ks))
        tread(0, ks)
    tr_advance()
    prep_store("L_pst")

    OFF = 70
    NT = 6 * 32 + 8

    def C(tile, i):
        d = D + (tile & 1) * 16 + (i >> 2) * 8
        i &= 3
        S(f"v_cvt_pk_bf16_f32 v{d+i}, v{d+2*i}, v{d+2*i+1}")

    def W(tile, h, tag):
        d = D + (tile & 1) * 16 + h * 8
        S.mem("lg", f"ds_write_b128 v{WB if h else WA}, v[{d}:{d+3}] offset:{(tile & 7)*2048}", tag)

    def U(gt):
        if not (0 <= gt < NT): return
        c = gt >> 2
        if gt % 32 == 0:
            S("s_xor_b32 s53, s53, 0x10000")
        if (gt & 3) == 0:
            S.wait("vm", ("ad", c))
        a = AD + (c & 3) * 4 + (gt & 3)
        S(f"v_add_u32_sdwa v{UA}, v{a}, s53 dst_sel:DWORD dst_unused:UNUSED_PAD src0_sel:WORD_0 src1_sel:DWORD")
        S(f"v_add_u32_sdwa v{UA+1}, v{a}, s53 dst_sel:DWORD dst_unused:UNUSED_PAD src0_sel:WORD_1 src1_sel:DWORD")

    def R(gt):
        if not (0 <= gt < NT): return
        g = G + (gt & 3) * 8
        S.mem("lg", f"ds_read_b128 v[{g}:{g+3}], v{UA}", ("g", gt))
        S.mem("lg", f"ds_read_b128 v[{g+4}:{g+7}], v{UA+1}", ("g", gt))

    def SM(gt):
        if not (0 <= gt < NT): return
        S.wait("lg", ("g", gt))
        g = G + (gt & 3) * 8
        a = ACC + ((gt & 31) + (24 if gt >= 192 else 0)) * 4
        S(f"v_smfmac_f32_16x16x64_bf16 v[{a}:{a+3}], v[{SEL}:{SEL+3}], v[{g}:{g+7}], v{IDX}")

    def M(p, nb, ks):
        if p is None: return
        if p == 0:
            S.wait("lg", ("tr", nb, ks))
        if nb == 0:
            S.wait("lg", ("af", p, ks))
        d = D + (nb & 1) * 16
        k = nb * 8 + ks
        c = "0" if ks == 0 else f"v[{d}:{d+15}]"
        S(f"v_mfma_f32_32x32x16_bf16 v[{d}:{d+15}], v[{AF+4*ks}:{AF+4*ks+3}], a[{4*k}:{4*k+3}], {c}")

    def pk(tq, i):
        a = ACC + tq * 16
        S(f"v_cvt_pk_bf16_f32 v{a+i}, v{a+2*i}, v{a+2*i+1}")

    LP, FA, FB, F6R = ACC, ACC + 4, ACC + 8, ACC + 12
    DT = [ACC + 16, ACC + 20, ACC + 24, ACC + 28]
    IXR = ACC + 32
    IXV, STV = TRB, DMAV
    TMP = ACC + 88

    def wsreg(k):
        return 64 + 4 * k if k < 16 else 16 + 4 * (k - 16)

    def pnn_consts(part):
        t0, t1, t2 = DT[0], DT[0] + 1, DT[0] + 2
        if part == 0:
            S(f"v_and_b32 v{t0}, 15, v{VL}\nv_lshrrev_b32 v{t1}, 4, v{VL}\nv_and_b32 v{t2}, 3, v{VL}")
            S(f"s_add_u32 s57, s51, {TB1}\ns_mul_i32 s58, s3, 9216")
        elif part <= 4:
            jj = part - 1
            r = LP + jj
            S(f"v_add_u32 v{r}, {4*jj}, v{t1}\nv_xor_b32 v{r}, v{r}, v{t0}\nv_lshlrev_b32 v{r}, 4, v{r}")
            S(f"v_add_u32 v{r}, {3072 - 1024*jj}, v{r}")
        elif part <= 12:
            ks, hf = (part - 5) >> 1, (part - 5) & 1
            a, b, c = FA + ks, FB + ks, F6R + ks
            if hf == 0:
                S(f"v_add_u32 v{a}, {4*ks}, v{t1}")
                S(f"v_xor_b32 v{c}, v{a}, v{t2}\nv_xor_b32 v{a}, v{a}, v{t0}")
                S(f"v_lshlrev_b32 v{a}, 4, v{a}\nv_lshlrev_b32 v{c}, 4, v{c}")
            else:
                S(f"v_lshl_add_u32 v{a}, v{t0}, 8, v{a}\nv_lshl_add_u32 v{c}, v{t2}, 8, v{c}")
                S(f"v_add_u32 v{b}, s58, v{a}\nv_add_u32 v{c}, s58, v{c}\nv_add_u32 v{a}, s57, v{a}")
        else:
            S(f"v_cmp_gt_u32 vcc, 4, v{t0}\nv_mov_b32 v{t2}, 0x100000")
            S(f"s_sub_u32 s{S_TAB}, s{P_TAB}, 3072\ns_subb_u32 s{S_TAB+1}, s{P_TAB+1}, 0")
            S(f"s_mov_b32 s{S_TAB+2}, {256000 + 3072}\ns_mov_b32 s{S_TAB+3}, 0x20000")
            for ks in range(4):
                S(f"v_cndmask_b32 v{F6R+ks}, v{t2}, v{F6R+ks}, vcc")

    def ixreg(bi, I):
        return IXR + 4 * ((bi * 7 + I) % 14)

    def ixload(bi, I):
        r = ixreg(bi, I)
        if I < 6:
            S.mem("vm", f"buffer_load_dwordx4 v[{r}:{r+3}], v{IXV}, {srdt(S_IDX)}, s59 offen offset:{400*bi + 16*I}", ("ix", bi, I))
        else:
            S.mem("vm", f"buffer_load_dword v{r}, v{IXV}, {srdt(S_IDX)}, s59 offen offset:{400*bi + 96}", ("ix", bi, I))

    def pdma(bi, I, jj):
        r = ixreg(bi, I) + jj
        if jj == 0:
            if bi > 0: S.wait("lg", ("er", bi - 1, I))
            S.wait("vm", ("ix", bi, I))
            S(f"s_add_u32 m0, s57, {I*4096}" if I < 4 else f"s_add_u32 m0, s58, {(I-4)*4096}")
        S(f"v_lshl_add_u32 v{r}, v{r}, 8, v{LP+jj}")
        S.mem("vm", f"buffer_load_dwordx4 v{r}, {srdt(S_TAB)}, 0 offen offset:{jj*1024} lds", ("pd", bi, I))

    def pdma_rb(bi, I):
        for jj in range(4 if I < 6 else 1): pdma(bi, I, jj)

    def store_setup():
        S(f"v_and_b32 v{STV}, 15, v{VL}\nv_lshlrev_b32 v{STV}, 4, v{STV}")
        S(f"v_bfe_u32 v0, v{VL}, 4, 1\nv_lshl_add_u32 v{STV}, v0, 15, v{STV}")
        S(f"v_lshrrev_b32 v0, 5, v{VL}\nv_lshl_add_u32 v{STV}, v0, 9, v{STV}")
        S("s_lshl_b32 s45, s37, 22\ns_lshl_b32 s46, s36, 16\ns_add_u32 s45, s45, s46")
        S("s_lshl_b32 s46, s3, 13\ns_add_u32 s45, s45, s46")
        S("s_lshl_b32 s46, s37, 1\ns_add_u32 s46, s46, 2")

    def pstore(tq, h):
        if h == 0:
            S(f"s_add_u32 s47, s46, {tq}\ns_and_b32 s47, s47, 7\ns_lshl_b32 s47, s47, 10\ns_add_u32 s47, s47, s45")
        a = ACC + 16 * tq + 4 * h
        S.mem("vm", f"buffer_store_dwordx4 v[{a}:{a+3}], v{STV}, {srdt(S_P)}, s47 offen offset:{256*h} sc1", "pstore")

    def ereg(bi, I, ks):
        return (bi & 1) * 112 + (I * 4 + ks) * 4

    def eread(bi, I, ks):
        if ks == 0:
            S.wait("vm", ("pd", bi, I))
        a = ereg(bi, I, ks)
        if I < 4: adr, off = FA + ks, I * 4096
        elif I < 6: adr, off = FB + ks, (I - 4) * 4096
        else: adr, off = F6R + ks, 8192
        S.mem("lg", f"ds_read_b128 a[{a}:{a+3}], v{adr} offset:{off}", ("er", bi, I))

    def wsdma(i):
        if i == 0:
            S.srd(S_T0, P_WS, 4 * 32768, WS_WS)
            S(f"s_lshl_b32 s48, s37, 15\ns_mul_i32 s44, s3, 7168\ns_add_u32 s48, s48, s44\ns_add_u32 s49, s44, {STG}")
        if i % 4 == 0:
            S(f"s_add_u32 m0, s49, {i*1024}\ns_add_u32 s50, s48, {i*1024}")
        S.mem("vm", f"buffer_load_dwordx4 v{ADV}, {srdt(S_T0)}, s50 offen offset:{(i & 3)*1024} sc1 lds", "wsd")

    def wsread(k):
        r = wsreg(k)
        S.mem("lg", f"ds_read_b128 v[{r}:{r+3}], v{TRA} offset:{1024*k}", ("ws", k))

    J = {}

    def job(pi, gap, f):
        J.setdefault((pi, gap), []).append(f)

    def gjob(seg, g, f):
        job(seg * 32 + g // 2, g & 1, f)

    PREV = {4: 1, 5: 2, 6: 3, 7: 5}

    def tdj(nb, j):
        if j == 0 and nb >= 4: S.wait("lg", ("tr", PREV[nb], 7))
        tdma(nb, j)
    plan = {1: (None, 4), 2: (0, 10), 3: (2, 14), 4: (7, 20), 5: (13, 26), 6: (17, 34), 7: (29, 44)}
    for nb, (gd, gr) in plan.items():
        if gd is not None:
            for n in range(8): gjob(0, gd + n // 4, lambda nb=nb, n=n: tdj(nb, n))
        for n in range(8): gjob(0, gr + n // 4, lambda nb=nb, n=n: tread(nb, n))
    for k in range(8): gjob(0, [20, 22, 24, 26, 32, 34, 36, 38][k], lambda k=k: wsite(k, ("dma", 1)))
    gjob(0, 45, wdma_adv)
    job(32 + 26, 2, lambda: ws_store("L_wss"))
    job(64 + 20, 2, lambda: ws_sig("L_wsg"))

    def pfp():
        S.srd(S_T0, P_WP, 20000)
        S(f"v_mov_b32 v49, 0x7ff00000\nv_cmp_gt_u32 vcc, 2, v{VL}")
        S("s_lshr_b32 s44, s2, 3\ns_lshl_b32 s44, s44, 2\ns_add_u32 s44, s44, s3\ns_lshl_b32 s44, s44, 8")
        S("v_cndmask_b32 v48, v49, v46, vcc")
        S.mem("vm", f"buffer_load_dword v47, v48, {srdt(S_T0)}, s44 offen", "pfp")
    job(OPT["pfw"], 1, lambda: (pfp(), pfi(), pfw(2)))
    job(32 + 16, 1, lambda: ws_loads("L_wsl"))

    def pfl_setup():
        S("s_and_b32 s39, s36, 7\ns_lshl_b32 s39, s39, 16\ns_lshl_b32 s44, s36, 4\ns_add_u32 s39, s39, s44\ns_lshl_b32 s44, s3, 14\ns_add_u32 s39, s39, s44")
        S(f"v_and_b32 v0, 0x30, v{VL}\nv_lshlrev_b32 v0, 24, v0\nv_lshl_add_u32 v0, v{VL}, 10, v0\nv_add_u32 v0, s39, v0")
        S(f"s_mul_i32 s39, s37, 24*131072\ns_add_u32 s39, s39, {20*131072}")
    job(64 + 30, 2, pfl_setup)

    def pfl():
        S.mem("vm", f"buffer_load_dword v{VW}, v0, {srdt(S_W1)}, s39 offen", "pfl")
        S("s_cmp_lt_u32 s39, 96*131072\ns_cselect_b32 s39, 96*131072, s14")
    for seg in range(3, 7): job(seg * 32 + 3, 1, pfl)

    def bar0():
        S.wait("vm", ("dma", 1))
        S("s_barrier")
    job(27, 2, bar0)

    def nonce():
        S.wait("vm", "nld")
        S(f"s_mov_b32 s42, {OPT['spin']}")
        S("L_non:")
        S("v_readfirstlane_b32 s56, v51")
        S("s_cmp_lg_u32 s56, 0\ns_cbranch_scc1 L_nond")
        S(f"buffer_load_dword v51, v50, {srdt(S_DBG)}, 0 offen sc1")
        S("s_waitcnt vmcnt(0)\ns_sub_u32 s42, s42, 1\ns_cmp_lg_u32 s42, 0\ns_cbranch_scc1 L_non")
        S("L_nond:")
    job(1, 2, nonce)

    def sig1():
        S("s_cmp_lg_u32 s3, 0\ns_cbranch_scc1 L_sig1")
        S.wait("vm", "pst", local=True)
        S("s_lshl_b32 s42, s41, 6\ns_add_u32 s42, s42, s40\ns_lshl_b32 s42, s42, 4")
        S(f"v_mov_b32 v48, s56\nv_lshlrev_b32 v49, 20, v{VL}")
        S.mem("vm", f"buffer_store_dword v48, v49, {srdt(S_T1)}, s42 offen sc1", "sig1", opt=True)
        S("L_sig1:")
    job(OPT["sg1"], 2, sig1)
    for k in range(8): job(32 + OPT["w2"] + k, 1, lambda k=k: wsite(k, ("dma", 2)))
    job(32 + OPT["w2"] + 8, 1, wdma_adv)
    for k in range(8): job([32 + 17, 32 + 19, 32 + 21, 32 + 23, 64 + 6, 64 + 10, 64 + 14, 64 + 18][k], 1, lambda k=k: wsite(k, ("dma", 3)))
    job(64 + 19, 1, wdma_adv)
    for gi in range(32):
        job(32 + gi, 0, lambda gi=gi: S(f"v_mov_b64 v[{ACC+4*gi}:{ACC+4*gi+1}], 0\nv_mov_b64 v[{ACC+4*gi+2}:{ACC+4*gi+3}], 0"))
    job(32 + 3, 2, lambda: S(f"v_xor_b32 v{WA}, 0x10000, v{WA}\nv_xor_b32 v{WB}, 0x10000, v{WB}"))

    def poll1_issue():
        S("s_cmp_lg_u32 s3, 1\ns_cbranch_scc1 L_p1i\ns_lshl_b32 s43, s37, 10")
        S.mem("vm", f"buffer_load_dword v50, v{ADV}, {srdt(S_T1)}, s43 offen sc1", "p1", opt=True)
        S("L_p1i:")
    job(32 + 22, 1, poll1_issue)

    def bar1():
        S("s_cmp_lg_u32 s3, 1\ns_cbranch_scc1 L_poll1d")
        S(f"s_mov_b32 s42, {OPT['spin']}\ns_lshl_b32 s43, s37, 10")
        S("L_poll1:")
        S("s_waitcnt vmcnt(0)")
        S("v_cmp_eq_u32 vcc, s56, v50")
        S("s_nop 1\ns_cmp_eq_u64 vcc, -1\ns_cbranch_scc1 L_poll1d")
        S(f"s_sleep 4\nbuffer_load_dword v50, v{ADV}, {srdt(S_T1)}, s43 offen sc1")
        S("s_sub_u32 s42, s42, 1\ns_cmp_lg_u32 s42, 0\ns_cbranch_scc1 L_poll1")
        S("L_poll1d:")
        S.wait("vm", ("dma", 2))
        S.wait("lg", ("w", 7))
        S("s_barrier")
        for c in range(4): adload(c)
        if OPT["pfa"]:
            S("s_and_b32 s42, s36, 7\ns_mul_i32 s42, s42, 5888\ns_add_u32 s42, s42, s55")
            S(f"v_lshlrev_b32 v50, 7, v{VL}\nv_mov_b32 v51, 0x7ff00000\nv_cmp_gt_u32 vcc, 46, v{VL}")
            S("s_nop 1\nv_cndmask_b32 v50, v51, v50, vcc")
            S.mem("vm", f"buffer_load_dword v{VW}, v50, {srdt(S_AD)}, s42 offen sc1", "pfa")
    job(32 + 27, 2, bar1)
    for seg in range(2, 7):
        p = seg - 1
        for k in range(3): job(seg * 32 + 22 + 4 * k, 1, lambda k=k, p=p: wsite(k, ("dma", p + 3)))
        if seg >= 3:
            for k in range(3, 8): job(seg * 32 + 2 + 4 * (k - 3), 1, lambda k=k, p=p: wsite(k, ("dma", p + 2)))
            job(seg * 32 + 19, 1, wdma_adv)
    B7 = 7 * 32
    def pollw0():
        S("s_lshl_b32 s43, s37, 10")
        S.mem("vm", f"buffer_load_dword v0, v{ADV}, {srdt(S_T1)}, s43 offen offset:4 sc1", "pw")

    def pollw():
        S.wait("vm", "pw")
        S(f"s_mov_b32 s42, {OPT['spin']}")
        S("L_pollw:")
        S("v_cmp_eq_u32 vcc, s56, v0")
        S("s_nop 1\ns_cmp_eq_u64 vcc, -1\ns_cbranch_scc1 L_pollwd")
        S(f"s_sleep 4\nbuffer_load_dword v0, v{ADV}, {srdt(S_T1)}, s43 offen offset:4 sc1")
        S("s_waitcnt vmcnt(0)\ns_sub_u32 s42, s42, 1\ns_cmp_lg_u32 s42, 0\ns_cbranch_scc1 L_pollw")
        S("L_pollwd:")
    job(B7 + 0, 1, pollw0)
    job(B7 + 6, 0, pollw)
    job(B7 + 6, 1, store_setup)
    for i in range(7): job(B7 + 7 + i, 1, lambda i=i: wsdma(i)) if i < 3 else job(B7 + 10, 1, lambda i=i: wsdma(i)) if i == 3 else job(B7 + 7 + i, 1, lambda i=i: wsdma(i))
    for tq in range(6):
        base = B7 + 4 * tq + 10
        slots = [(base, 1), (base, 1), (base, 1), (base, 2), (base + 1, 0), (base + 1, 2), (base + 2, 1), (base + 2, 1)]
        for i in range(8): job(*slots[i], lambda tq=tq, i=i: pk(tq, i))
        job(base + 2, 1, lambda tq=tq: pstore(tq, 0))
        job(base + 4, 1, lambda tq=tq: pstore(tq, 1))
    for part in range(14):
        job(B7 + 19 + part, 2 if part % 2 else 0, lambda part=part: pnn_consts(part))

    def ixsetup():
        S(f"v_lshrrev_b32 v{IXV}, 4, v{VL}\nv_mul_u32_u24 v{IXV}, 100, v{IXV}")
        S("s_lshl_b32 s59, s60, 4\ns_lshl_b32 s44, s3, 2\ns_add_u32 s59, s59, s44\ns_mul_i32 s59, s59, 400")
        S(f"v_add_u32 v{TRA}, {STG}, v{ADV}")
    job(B7 + 8, 2, ixsetup)
    for I in range(4): job(B7 + 23 + I, 1, lambda I=I: ixload(0, I))
    for I in range(4, 8): job(B7 + 23 + I, 1, lambda I=I: ixload(I // 7, I % 7))
    B8 = 8 * 32
    for I in range(1, 5): job(B8 + 0, 1, lambda I=I: ixload(1, I))
    for I in range(5, 7): job(B8 + 4, 1, lambda I=I: ixload(1, I))
    for k in range(16): job(B8 + 3 + k // 4, 0, lambda k=k: wsread(15 - k))
    for I in range(4): job(B8 + 5 + I, 3, lambda I=I: pdma_rb(0, I))

    last_pair = NT - 1 + OFF
    GO_P = {0: 0, 1: 1, 2: None, 3: 2, 4: 3, 5: 4, 6: 5, 7: 6, 8: None}
    for pi in range(0, last_pair + 1):
        seg, gi = pi >> 5, pi & 31
        nb, j = gi >> 2, gi & 3
        p = GO_P[seg]
        if gi == 0:
            S.mark(("seg", seg))
            if seg == 1: stamp(3)
            if seg == 2: stamp(4)
            if seg == 7: stamp(1, 5)
            if seg == 8: stamp(2, 5)
        if seg == 0 and gi in (0, 4, 12, 20, 28): stamp({0: 1, 4: 2, 12: 3, 20: 4, 28: 5}[gi], 3)
        if seg == 1 and gi in (0, 8, 16, 27, 28): stamp({0: 1, 8: 2, 16: 3, 27: 4, 28: 5}[gi], 4)
        if seg == 8 and gi in (3, 6, 9): stamp({3: 3, 6: 4, 9: 5}[gi], 5)
        if p is not None: Tl = p * 8 + nb - 1
        else: Tl = 55 if (seg == 8 and nb == 0) else -1
        cv = 0 <= Tl < 56
        if nb == 0:
            sch = {0: (["C0"], ["C1", "C2", "C3", "C4"], ["C5"]), 1: (["C6"], ["W0"], ["C7"]), 2: ([], ["W1"], []), 3: ([], [], [])}
        elif nb == 1:
            sch = {0: (["C0"], ["C1", "C2", "C3"], ["C4"]), 1: (["C5"], ["C6", "C7"], []), 2: ([], ["W0"], []), 3: ([], ["W1"], [])}
        else:
            sch = {0: (["C0"], ["C1", "C2", "C3"], ["C4"]), 1: (["C5"], ["W0"], ["C6"]), 2: (["C7"], [], []), 3: ([], ["W1"], [])}
        ga_, gb_, gs_ = sch[j]
        if seg <= 1 and j == 0:
            ga_, gb_ = [], ga_ + gb_

        def do(ops):
            if not cv: return
            for o in ops:
                if o[0] == "C": C(Tl, int(o[1]))
                else: W(Tl, int(o[1]), ("w", Tl))

        def jobs(gap):
            for f in J.pop((pi, gap), []): f()

        tr = nb == 7 and p is not None and p < 6
        if seg == 8 and gi == 0: S("s_nop 7")
        M(p, nb, 2 * j)
        R(pi + 3 - OFF)
        if tr: trread(2 * j, 0, ("af", p + 1, 2 * j)); trread(2 * j, 1, ("af", p + 1, 2 * j))
        U(pi + 4 - OFF)
        do(ga_)
        jobs(0)
        M(p, nb, 2 * j + 1)
        do([o for o in gb_ if o[0] == "W"])
        if tr: trread(2 * j + 1, 0, ("af", p + 1, 2 * j + 1)); trread(2 * j + 1, 1, ("af", p + 1, 2 * j + 1))
        gt = pi + 4 - OFF
        if 0 <= gt < NT - 16 and (gt & 3) == 3:
            adload((gt >> 2) + 4)
        jobs(1)
        do([o for o in gb_ if o[0] != "W"])
        SM(pi - OFF)
        do(gs_)
        if tr and j == 3: tr_advance()
        jobs(2)
        if seg >= 3 and gi == 2:
            S.wait("lg", ("w", Tl))
            if seg == 8: S.wait("vm", "wsd")
            S("s_barrier")
        if seg >= 3 and gi == 5:
            if p is not None and p < 6:
                S.wait("vm", ("dma", p + 1))
            S("s_barrier")
            if p is not None:
                S(f"v_xor_b32 v{WA}, 0x10000, v{WA}\nv_xor_b32 v{WB}, 0x10000, v{WB}")
        jobs(3)
    assert not J, J.keys()
    S.mark(("seg", 9))
    S("s_barrier")
    stamp(6)
    for I in range(4, 7): pdma_rb(0, I)
    S.srd(S_W1, P_WS, 4096, WS_FL + 4096)
    for ks in range(4): eread(0, 0, ks)
    for ks in range(4): eread(0, 1, ks)

    ACr = [1, 2, 13, 14]
    PJ = {k: [] for k in range(112)}
    cap = {}

    def place(t, kind, f, lim=2):
        while cap.get((t, kind), 0) >= lim: t += 1
        cap[(t, kind)] = cap.get((t, kind), 0) + 1
        PJ[t].append(f)
        return t
    col0 = lambda Jc: Jc * (Jc + 1) // 2
    LAT = OPT["lat"]
    t_pd = {(0, I): (-LAT if I < 4 else -1) for I in range(7)}
    t_er = {(0, 0): -1, (0, 1): -1}
    last = {"er": 0, "pd": 0}
    order = [(b, I) for b in range(4) for I in range(7)]
    for (b, I) in order:
        if (b, I) not in t_pd:
            t = max(t_er[(b - 1, I)] + 2, last["pd"])
            for jj in range(4 if I < 6 else 1):
                t = place(t, "pd", lambda b=b, I=I, jj=jj: pdma(b, I, jj), lim=2 if b == 1 else 1)
            last["pd"] = t
            t_pd[(b, I)] = t
        if (b, I) not in t_er:
            t = max(t_pd[(b, I)] + LAT, last["er"], 28 * (b - 1), 0)
            dl = 28 * b + col0(I) - 3
            t = min(t, max(dl, last["er"], 0))
            for ks in range(4):
                t = place(t, "er", lambda b=b, I=I, ks=ks: eread(b, I, ks), lim=2)
            last["er"] = t
            t_er[(b, I)] = t
            assert t < 28 * b + col0(I) or (b, I) in ((0, 2),), (b, I, t)
    for (b, I) in order:
        if b >= 2:
            t = max(t_pd[(b - 2, I)] + 1, 0)
            place(t, "ix", lambda b=b, I=I: ixload(b, I), lim=1)
    for k in range(16, 28): place((k - 16) // 2, "ws", lambda k=k: wsread(k))
    for i in range(16): place(i // 2 + 1, "pk", lambda i=i: pk(6 + i // 8, i % 8))
    place(6, "st", lambda: pstore(6, 0)); place(8, "st", lambda: pstore(6, 1))
    place(10, "st", lambda: pstore(7, 0)); place(12, "st", lambda: pstore(7, 1))

    def sig2():
        S.wait("vm", "pstore")
        S("s_barrier")
        S("s_or_b32 s44, s3, s61\ns_cmp_lg_u32 s44, 0\ns_cbranch_scc1 L_sig2")
        S(f"s_lshl_b32 s44, s2, 4\nv_mov_b32 v{TMP}, s56\nv_lshlrev_b32 v{TMP+1}, 20, v{VL}")
        S.mem("vm", f"buffer_store_dword v{TMP}, v{TMP+1}, {srdt(S_W1)}, s44 offen sc1", "sig2", opt=True)
        S("L_sig2:")
    PJ[OPT["sg2"]].append(sig2)
    FV = TMP + 2
    B1R, W2R = ACC + 96, ACC + 112

    def final_setup():
        S(f"v_and_b32 v{FV}, 7, v{VL}\nv_lshlrev_b32 v{FV}, 4, v{FV}")
        S(f"v_bfe_u32 v{FV+1}, v{VL}, 4, 1\nv_lshl_add_u32 v{FV}, v{FV+1}, 22, v{FV}")
        S(f"v_bfe_u32 v{FV+1}, v{VL}, 3, 1\nv_lshrrev_b32 v{TMP}, 5, v{VL}\nv_lshl_add_u32 v{FV+1}, v{TMP}, 1, v{FV+1}")
        S(f"v_lshl_add_u32 v{FV}, v{FV+1}, 18, v{FV}")
        S(f"s_lshl_b32 s44, s3, 8\nv_lshl_add_u32 v{FV+1}, v{FV+1}, 6, s44")
        S.srd(S_T0, P_B1, 1024)
        S.srd(S_T1, P_W2, 1024)

    def final_setup2():
        for i in range(4):
            S.mem("vm", f"buffer_load_dwordx4 v[{B1R+4*i}:{B1R+4*i+3}], v{FV+1}, {srdt(S_T0)}, 0 offen offset:{16*i}", "b1")
            S.mem("vm", f"buffer_load_dwordx4 v[{W2R+4*i}:{W2R+4*i+3}], v{FV+1}, {srdt(S_T1)}, 0 offen offset:{16*i}", "b1")
        S.srd(S_T0, P_B2, 2)
        S.srd(S_T1, P_OUT, 8192)
        S(f"v_mov_b32 v{TMP}, 0")
        S.mem("vm", f"buffer_load_ushort v{TMP+1}, v{TMP}, {srdt(S_T0)}, 0 offen", "b1")
    PJ[70].append(final_setup); PJ[72].append(final_setup2)

    def poll2():
        f = TMP + 4
        S("s_cmp_lg_u32 s3, 1\ns_cbranch_scc1 L_poll2d")
        S(f"s_mov_b32 s42, {OPT['spin']}")
        S("L_poll2:")
        for i in range(4):
            S(f"buffer_load_dword v{f+i}, v{ADV}, {srdt(S_W1)}, 0 offen offset:{1024*i} sc1")
        S("s_waitcnt vmcnt(0)")
        for i in range(4): S(f"v_xor_b32 v{f+i}, s56, v{f+i}")
        S(f"v_or3_b32 v{f}, v{f}, v{f+1}, v{f+2}\nv_or_b32 v{f}, v{f}, v{f+3}")
        S(f"v_cmp_eq_u32 vcc, 0, v{f}")
        S("s_nop 1\ns_cmp_eq_u64 vcc, -1\ns_cbranch_scc1 L_poll2d")
        S("s_sleep 4\ns_sub_u32 s42, s42, 1\ns_cmp_lg_u32 s42, 0\ns_cbranch_scc1 L_poll2")
        S("L_poll2d:")
        S("s_barrier")
        S("s_lshl_b32 s43, s3, 20\ns_lshl_b32 s44, s60, 7\ns_add_u32 s43, s43, s44")

    def fload(t, s):
        S(f"s_add_u32 s52, s43, {t * 32768}" if s == 0 else f"s_add_u32 s52, s52, {2 << 22}")
        a = 8 * t + 4 * s
        S.mem("vm", f"buffer_load_dwordx4 a[{a}:{a+3}], v{FV}, {srdt(S_P)}, s52 offen sc1", ("fl", t))
    PJ[84 + OPT["pk"]].append(poll2)
    for t in range(8):
        PJ[85 + OPT["pk"] + t] += [lambda t=t: fload(t, 0), lambda t=t: fload(t, 1)]

    pend = []

    def fma_ops():
        d, w, first, fin = pend.pop(0)
        ops = []
        for r in range(4):
            ops.append(f"v_mul_f32 v{ACr[r]}, v{d+r}, v{w+r}" if first else f"v_fmac_f32 v{ACr[r]}, v{d+r}, v{w+r}")
        if fin is not None:
            ops.append(f"v_add_f32 v{ACr[0]}, v{ACr[0]}, v{ACr[1]}")
            ops.append(f"v_add_f32 v{ACr[2]}, v{ACr[2]}, v{ACr[3]}")
            ops.append(f"v_add_f32 v{ACr[0]}, v{ACr[0]}, v{ACr[2]}")
            ops.append(f"v_accvgpr_write_b32 a{252+fin}, v{ACr[0]}")
        return ops

    for gk in range(112):
        bi, k = gk // 28, gk % 28
        I, Jc = BLOCKS[k]
        if k == 0: stamp(2 + bi, 1)
        side = PJ[gk]
        if I == 0:
            S.wait("lg", ("er", bi, Jc))
        d = DT[gk % 4]
        fm = []
        if len(pend) >= 2:
            if gk - 2 < 28: S.wait("lg", ("ws", gk - 2))
            fm = fma_ops()
        for ks in range(4):
            aI, aJ = ereg(bi, I, ks), ereg(bi, Jc, ks)
            c = "0" if ks == 0 else f"v[{d}:{d+3}]"
            S(f"v_mfma_f32_16x16x32_bf16 v[{d}:{d+3}], a[{aI}:{aI+3}], a[{aJ}:{aJ+3}], {c}")
            for _ in range((len(side) + 3 - ks) // (4 - ks)): side.pop(0)()
            for _ in range((len(fm) + 3 - ks) // (4 - ks)): S(fm.pop(0))
        pend.append((d, wsreg(k), k == 0, bi if k == 27 else None))
    for o in fma_ops(): S(o)
    stamp(7)
    X, W2, Y, R0 = 64, 96, ACC + 32, ACC + 64
    S.wait("vm", "b1")
    for t in range(8):
        for r in range(4):
            src = B1R + 2 * t + (r >> 1)
            S(f"v_and_b32 v{X+4*t+r}, 0xffff0000, v{src}" if r & 1 else f"v_lshlrev_b32 v{X+4*t+r}, 16, v{src}")
    for o in fma_ops(): S(o)
    for t in range(8):
        S.wait("vm", ("fl", t))
        S(f"v_smfmac_f32_16x16x64_bf16 v[{X+4*t}:{X+4*t+3}], v[{SEL}:{SEL+3}], a[{8*t}:{8*t+7}], v{IDX}")
        for r in range(4):
            src = W2R + 2 * t + (r >> 1)
            S(f"v_and_b32 v{W2+4*t+r}, 0xffff0000, v{src}" if r & 1 else f"v_lshlrev_b32 v{W2+4*t+r}, 16, v{src}")
    for i in range(4): S(f"v_accvgpr_read_b32 v{R0+i}, a{252+i}")
    for sh in (1, 2, 4, 8):
        S("s_nop 1")
        for i in range(4):
            S(f"v_add_f32_dpp v{R0+i}, v{R0+i}, v{R0+i} row_ror:{sh} row_mask:0xf bank_mask:0xf")
    t0 = R0 + 4
    S(f"v_lshrrev_b32 v{t0}, 4, v{VL}\nv_lshlrev_b32 v{t0}, 6, v{t0}\ns_lshl_b32 s44, s3, 4\ns_add_u32 s44, s44, {FR+256}\nv_add_u32 v{t0}, s44, v{t0}")
    S.mem("lg", f"ds_write_b128 v{t0}, v[{R0}:{R0+3}]", "lpw")
    c1 = -2 * math.sqrt(2 / math.pi) * math.log2(math.e); c2 = c1 * 0.044715
    A0 = t0 + 2
    S(f"s_mov_b32 s42, {f2h(c2)}\nv_mov_b32 v{t0+1}, {f2h(c1)}\nv_mov_b32 v{A0}, 0\nv_mov_b32 v{A0+1}, 0")
    for hh in range(2):
        ks = range(16 * hh, 16 * hh + 16)
        for k in ks: S(f"v_mul_f32 v{Y+k}, v{X+k}, v{X+k}")
        for k in ks: S(f"v_fma_f32 v{Y+k}, v{Y+k}, s42, v{t0+1}")
        for k in ks: S(f"v_mul_f32 v{Y+k}, v{Y+k}, v{X+k}")
        for k in ks: S(f"v_exp_f32 v{Y+k}, v{Y+k}")
        for k in ks: S(f"v_add_f32 v{Y+k}, 1.0, v{Y+k}")
        for k in ks: S(f"v_rcp_f32 v{Y+k}, v{Y+k}")
        for k in ks: S(f"v_mul_f32 v{X+k}, v{X+k}, v{W2+k}")
        for k in ks: S(f"v_fmac_f32 v{A0 + (k & 1)}, v{X+k}, v{Y+k}")
    S(f"v_add_f32 v{A0}, v{A0}, v{A0+1}")
    S("s_nop 1")
    S(f"v_add_f32_dpp v{A0}, v{A0}, v{A0} row_ror:8 row_mask:0xf bank_mask:0xf")
    S(f"v_mov_b32 v{A0+1}, v{A0}")
    S("s_nop 1")
    S(f"v_permlane32_swap_b32 v{A0}, v{A0+1}")
    S(f"v_add_f32 v{A0}, v{A0}, v{A0+1}")
    S(f"v_and_b32 v{t0}, 7, v{VL}\nv_lshlrev_b32 v{t0}, 3, v{t0}\nv_bfe_u32 v{A0+1}, v{VL}, 4, 1\nv_lshl_add_u32 v{t0}, v{A0+1}, 2, v{t0}")
    S(f"s_lshl_b32 s44, s3, 6\ns_add_u32 s44, s44, {FR}\nv_add_u32 v{t0}, s44, v{t0}")
    S.mem("lg", f"ds_write_b32 v{t0}, v{A0}", "dw")
    S.wait("lg", "ALL")
    S("s_barrier")
    S("s_cmp_lg_u32 s3, 0\ns_cbranch_scc1 L_fin")
    S(f"v_and_b32 v84, 15, v{VL}\nv_lshlrev_b32 v85, 2, v84\nv_add_u32 v85, {FR}, v85")
    for k in range(8):
        S(f"ds_read_b32 v{90+k}, v85 offset:{64*k}")
    S(f"v_lshlrev_b32 v89, 16, v{TMP+1}")
    S(f"v_lshlrev_b32 v86, 1, v84\nv_lshrrev_b32 v85, 4, v{VL}\nv_lshl_add_u32 v86, v85, 20, v86")
    S("s_lshl_b32 s44, s60, 5")
    S("s_waitcnt lgkmcnt(0)")
    for k in range(8):
        S(f"v_add_f32 v89, v89, v{90+k}")
    S("v_cvt_pk_bf16_f32 v89, v89, v89")
    S(f"buffer_store_short v89, v86, {srdt(S_T1)}, s44 offen")
    if OPT["stamp"]:
        S("v_add_f32 v100, v94, v95\nv_add_f32 v101, v96, v97\nv_add_f32 v100, v100, v101")
        S.srd(S_T0, P_WS, 16384, WS_LP)
        S(f"v_lshlrev_b32 v101, 2, v84\nv_lshrrev_b32 v102, 4, v{VL}\nv_lshl_add_u32 v101, v102, 20, v101\ns_lshl_b32 s44, s60, 6")
        S(f"buffer_store_dword v100, v101, {srdt(S_T0)}, s44 offen")
    S("L_fin:")
    if OPT["stamp"]:
        S("s_memrealtime s[100:101]")
        S("s_waitcnt lgkmcnt(0)")
        S.srd(S_T0, P_WS, 0x20000, WS_ST)
        S("s_lshl_b32 s44, s2, 2\ns_add_u32 s44, s44, s3\ns_lshl_b32 s44, s44, 6")
        S("s_mov_b64 exec, 1\nv_mov_b32 v0, s44")
        for k in range(9): S(f"v_mov_b32 v{16+k}, s{84+2*k}")
        for k in range(3):
            S(f"buffer_store_dwordx4 v[{16+4*k}:{19+4*k}], v0, {srdt(S_T0)}, 0 offen offset:{16*k}")
    S("L_END:\ns_endpgm\nL_CODE_END:")

    items = S.resolve()
    segs = {}
    cur = -1
    for it in items:
        if isinstance(it, tuple) and it[0] == "mark":
            cur = it[1][1]
            continue
        segs.setdefault(cur, []).append(it)
    norm = lambda x: re.sub(r"_@\d+", "_lp", x)
    body = []
    n = len(segs[3])
    LS = range(3, 7)
    for sg in LS:
        assert len(segs[sg]) == n, (sg, len(segs[sg]), n)
    for i in range(n):
        its = [segs[sg][i] for sg in LS]
        if isinstance(its[0], tuple):
            assert all(x[0] == "wait" and x[1] == its[0][1] for x in its)
            vals = [x[2] for x in its if x[2] is not None]
            body.append(("wait", its[0][1], min(vals) if vals else None))
        else:
            assert all(norm(x) == norm(its[0]) for x in its), its
            body.append(norm(its[0]))
    out = []
    for sg in (-1, 0, 1, 2): out += flat(segs[sg])
    out += ["s_mov_b32 s38, 4"]
    if OPT["stamp"] and OPT["sm"] == 0: out += ["s_memrealtime s[94:95]"]
    if OPT["stamp"] and OPT["sm"] == 7: out += ["s_memrealtime s[86:87]", "s_memtime s[88:89]"]
    out += [".p2align 6", "L_LOOP:"]
    out += flat(body)
    out += ["s_sub_u32 s38, s38, 1", "s_cmp_lg_u32 s38, 0", "s_cbranch_scc1 L_LOOP"]
    if OPT["stamp"] and OPT["sm"] == 7: out += ["s_memrealtime s[90:91]", "s_memtime s[92:93]"]
    for sg in (7, 8, 9): out += flat(segs[sg])
    return "\n".join(out).replace("_@", "_")


def main():
    print("; generated by dev/gen4.py - deep_cross_pnn recsys, single fused kernel")
    print(f"; @launch grid=(256,1,1) block=(256,1,1) lds={LDS_SZ}")
    print('.amdgcn_target "amdgcn-amd-amdhsa--gfx950"\n.text')
    print(gen())
    print(f""".section .rodata,"a"
.p2align 6
.amdhsa_kernel {NAME}
  .amdhsa_next_free_vgpr 512
  .amdhsa_next_free_sgpr 102
  .amdhsa_accum_offset 256
  .amdhsa_group_segment_fixed_size 0
  .amdhsa_kernarg_size 80
  .amdhsa_user_sgpr_count 2
  .amdhsa_user_sgpr_kernarg_segment_ptr 1
  .amdhsa_system_sgpr_workgroup_id_x 1
  .amdhsa_float_denorm_mode_32 3
.end_amdhsa_kernel""")


main()
```

```python
import sys, struct, math, re

OPT = dict(stamp=0, sm=0, spin1=400, spin2=1000, spinw=40000, bc=1, dly=0, pfc=1, pfa=1, pfw=20, pfl=23, wo=0, early=0, sg1=0, sg2=30, pk=0, p2a=10, lat=10, clk=0)
for a in sys.argv[1:]:
    k, v = a.split("=")
    OPT[k] = int(v)

NAME = "standalone__deep_cross_pnn__recsys_kernel"

WS_ADDR = 0
WS_ADDR_SZ = 16 * 50 * 1024
WS_FL = 0x100000
WS_WS = 0x110000
WS_LP = 0x140000
WS_ST = 0x180000
WS_P = 0x200000
WS_P_SZ = 4 * 128 * 4096 * 8

TB1 = 65536
STG = 131072
STGSZ = 8448
GO = 156672
GT = GO + 3584
FR = GT + 2048
LDS_SZ = 163840

WA, WB, TRA, DMAV, ADV, VW, VL = 1, 2, 3, 4, 5, 6, 7
SEL, IDX, UA, TRB = 8, 12, 13, 15
AD, G, D, AF, ACC = 16, 32, 64, 96, 128
S_IDX, S_TAB, S_W1, S_AD, S_P, S_DBG, S_T0, S_T1 = 4, 8, 12, 16, 20, 24, 28, 32
P_IDX, P_TAB, P_WP, P_W1, P_B1, P_W2, P_B2, P_OUT, P_DBG, P_WS = 64, 66, 68, 70, 72, 74, 76, 78, 80, 82
BLOCKS = [(I, J) for J in range(7) for I in range(J + 1)]


def f2h(x):
    return "0x%08x" % struct.unpack("<I", struct.pack("<f", x))[0]


def srdt(s):
    return f"s[{s}:{s+3}]"


class Stream:
    def __init__(self):
        self.items = []
        self.nlab = 0

    def i(self, text):
        for ln in text.split("\n"):
            self.items.append(("i", ln, None, None))

    __call__ = i

    def mem(self, cls, text, tag=None, opt=False):
        self.items.append(("o" if opt else "m", text, cls, tag))

    def wait(self, cls, tag, local=False):
        self.items.append(("l" if local else "w", None, cls, tag))

    def mark(self, name):
        self.items.append(("k", name, None, None))

    def srd(self, d, base, size, off=0):
        if off:
            self.i(f"s_add_u32 s{d}, s{base}, {off}\ns_addc_u32 s{d+1}, s{base+1}, 0")
        else:
            self.i(f"s_mov_b32 s{d}, s{base}\ns_mov_b32 s{d+1}, s{base+1}")
        self.i(f"s_mov_b32 s{d+2}, {size}\ns_mov_b32 s{d+3}, 0x20000")

    def resolve(self):
        out = []
        issued = {"vm": [], "lg": []}
        done = {"vm": 0, "lg": 0}
        for kind, text, cls, tag in self.items:
            if kind == "i":
                out.append(text)
            elif kind == "k":
                out.append(("mark", text))
            elif kind in "mo":
                issued[cls].append((tag, kind == "o"))
                out.append(text)
            else:
                q = issued[cls]
                if tag == "ALL":
                    pos = len(q) - 1
                else:
                    idxs = [i for i, t in enumerate(q) if t[0] == tag]
                    assert idxs, f"wait for unknown tag {tag}"
                    pos = idxs[-1]
                n = sum(1 for t in q[pos + 1:] if not t[1])
                lim = 62 if cls == "vm" else 14
                if pos + 1 <= done[cls]:
                    out.append(("wait", cls, None))
                else:
                    out.append(("wait", cls, min(n, lim)))
                    if kind == "w": done[cls] = pos + 1
        return out


def flat(items):
    out = []
    for it in items:
        if isinstance(it, tuple):
            if it[0] == "wait" and it[2] is not None:
                out.append(f"s_waitcnt {'vmcnt' if it[1] == 'vm' else 'lgkmcnt'}({it[2]})")
        elif it:
            out.append(it)
    return out


def gen():
    S = Stream()
    COLD = []

    def sub(fn):
        keep = S.items
        S.items = []
        fn()
        out = flat(S.resolve())
        S.items = keep
        return out

    def stamp(k, mode=0):
        if OPT["stamp"] and (k in (0, 6, 7) or OPT["sm"] == mode):
            S(f"s_memrealtime s[{84+2*k}:{85+2*k}]")

    def dstamp(k, mode):
        if OPT["stamp"] and OPT["sm"] == mode:
            S(f"s_waitcnt vmcnt(0)\ns_memrealtime s[{84+2*k}:{85+2*k}]")

    GA = 128
    F, F6, TB, PSEL, OB0, OB1, LUT, C257, T, K, M1, M2, TA = 146, 147, 149, 150, 151, 152, 153, 154, 155, 156, 157, 158, 160

    def prep_loads():
        S(f"s_lshl_b32 s42, s3, 2\nv_bfe_u32 v148, v{VL}, 2, 2\nv_add_u32 v148, s42, v148")
        S("s_mul_i32 s42, s41, 96\ns_lshl_b32 s43, s3, 6\ns_add_u32 s42, s42, s43")
        S("v_lshl_add_u32 v144, v44, 2, s42")
        S(f"v_and_b32 v145, 3, v{VL}\nv_lshlrev_b32 v145, 2, v145\nv_add_u32 v145, 384, v145")
        S("v_cmp_gt_u32 vcc, 6, v148")
        S("s_mul_i32 s43, s40, 64*400")
        S("v_cndmask_b32 v144, v145, v144, vcc")
        S(f"v_lshrrev_b32 v145, 5, v{VL}\nv_lshlrev_b32 v145, 5, v145\nv_bfe_u32 v149, v{VL}, 4, 1\nv_add_u32 v145, v145, v149")
        S("v_mul_u32_u24 v145, 400, v145\nv_add_u32 v144, v144, v145")
        S("v_mov_b32 v145, 0x7ffffff0\nv_cmp_gt_u32 vcc, 7, v148")
        S("s_nop 1\nv_cndmask_b32 v144, v145, v144, vcc")
        for n in range(16):
            if n % 4 == 0 and n: S("s_add_u32 s43, s43, 3200")
            S.mem("vm", f"buffer_load_dword v{GA+n}, v144, {srdt(S_IDX)}, s43 offen offset:{(n % 4) * 800}", "prep")

    def greedy_consts():
        S(f"v_and_b32 v{F}, 3, v{VL}")
        S(f"v_lshlrev_b32 v{F6}, 6, v{F}")
        S(f"v_lshrrev_b32 v{T}, 2, v{VL}")
        S(f"s_lshl_b32 s42, s3, 10\ns_add_u32 s42, s42, {GT}")
        S(f"v_lshl_add_u32 v{TB}, v{T}, 6, s42")
        S(f"v_add_u32 v{K}, s42, v{ADV}\nv_mov_b64 v[{TA}:{TA+1}], 0\nv_mov_b64 v[{TA+2}:{TA+3}], 0")
        S.mem("lg", f"ds_write_b128 v{K}, v[{TA}:{TA+3}]", "gz")
        S(f"v_mul_u32_u24 v{PSEL}, 0x010101, v{F}\nv_lshl_or_b32 v{PSEL}, v{F}, 24, v{PSEL}\nv_xor_b32 v{PSEL}, 0x03020100, v{PSEL}")
        S(f"v_cmp_gt_u32 vcc, 7, v148\nv_mov_b32 v{K}, 0x4000")
        S(f"v_lshlrev_b32 v{OB0}, 2, v45\nv_cndmask_b32 v{T}, v{K}, v148, vcc")
        S(f"v_lshl_add_u32 v{OB0}, v{T}, 9, v{OB0}\nv_add_u32 v{OB0}, {GO}, v{OB0}")
        S(f"v_xor_b32 v{OB1}, 0x100, v{OB0}")
        S(f"s_mov_b32 s62, 0x24100400\ns_mov_b32 s63, 0x102\nv_mov_b32 v{LUT}, 0x3c3c3c3c\nv_mov_b32 v{C257}, 0x101")

    TAB = 176
    KK = [156, 164]

    def ga(n):
        r = GA + n
        if n == 0: S.wait("vm", "prep"); stamp(3, 2)
        S(f"v_and_b32 v{T}, 7, v{r}")
        S(f"v_lshrrev_b32 v{r}, 2, v{r}")
        S(f"v_lshlrev_b32 v{T}, 4, v{T}")
        S(f"v_xor_b32 v{T}, v{T}, v{F6}")
        S(f"v_lshl_add_u32 v{r}, v{r}, 8, v{T}")
        S(f"v_lshrrev_b32 v{T}, 2, v{T}")
        S(f"v_add_u32 v{TAB + n}, v{T}, v{TB}")

    def g_read(n):
        S.mem("lg", f"ds_read_b32 v{KK[n & 1]}, v{TAB + n}", ("gr", n))

    def g_chain(n):
        k = KK[n & 1]; m1, m2 = k + 1, k + 2
        tie = 0x03020100 if (n & 1) == 0 else 0x02030001
        L = [f"v_perm_b32 v{k}, v{LUT}, s62, v{k}",
             f"v_perm_b32 v{k}, v{k}, v{k}, v{PSEL}",
             "s_nop 0",
             f"v_add_u32_dpp v{k}, v{k}, v{k} quad_perm:[1,0,3,2] row_mask:0xf bank_mask:0xf",
             "s_nop 0",
             f"v_add_u32_dpp v{k}, v{k}, v{k} quad_perm:[2,3,0,1] row_mask:0xf bank_mask:0xf",
             f"v_add_u32 v{k}, {tie}, v{k}",
             f"v_min_u32_sdwa v{m1}, v{k}, v{k} dst_sel:DWORD dst_unused:UNUSED_PAD src0_sel:BYTE_0 src1_sel:BYTE_1",
             f"v_min_u32_sdwa v{m2}, v{k}, v{k} dst_sel:DWORD dst_unused:UNUSED_PAD src0_sel:BYTE_2 src1_sel:BYTE_3",
             f"v_min_u32 v{m1}, v{m1}, v{m2}",
             f"v_bitop3_b32 v{m1}, v{m1}, 3, v{F + 21 * (n & 1)} bitop3:0x6a"]
        return L

    def g_upd(n):
        k = KK[n & 1]; m1, m2 = k + 1, k + 2
        S(f"v_lshlrev_b32 v{m2}, 3, v{m1}")
        S(f"v_lshlrev_b32 v{m2}, v{m2}, 1")
        S.mem("lg", f"ds_add_u32 v{TAB + n}, v{m2}", "gadd")

    def g_out(n):
        k = KK[n & 1]; m1 = k + 1
        S(f"v_mul_u32_u24 v{m1}, v{m1}, v{C257}")
        mid = 1 if 4 <= n <= 11 else 0
        S(f"v_bitop3_b32 v{m1}, v{m1}, s63, v{OB0 + mid} bitop3:0x6a")
        S.mem("lg", f"ds_write_b16 v{m1}, v{GA+n} offset:{16*n}", "gw")

    def greedy():
        S(f"v_xor_b32 v{F+21}, 1, v{F}")
        for n in range(4):
            ga(n)
            S(f"v_xor_b32 v{KK[n & 1]+1}, {n}, v{F}")
            g_upd(n); g_out(n)
        ga(4); ga(5)
        for n in range(4, 16, 2):
            g_read(n); g_read(n + 1)
            if n >= 6: g_out(n - 2); g_out(n - 1)
            if n + 2 < 16: ga(n + 2); ga(n + 3)
            S.wait("lg", ("gr", n + 1))
            for x, y in zip(g_chain(n), g_chain(n + 1)):
                S(x)
                if not x.startswith("s_nop"): S(y)
            g_upd(n); g_upd(n + 1)
        g_out(14); g_out(15)
        S.wait("lg", "ALL")

    def prep_store():
        S(f"s_lshl_b32 s42, s3, 11\ns_add_u32 s42, s42, {GO}\nv_add_u32 v144, s42, v{ADV}")
        for i in range(2):
            S.mem("lg", f"ds_read_b128 v[{128+4*i}:{131+4*i}], v144 offset:{1024*i}", "go")
        S("s_lshr_b32 s42, s40, 4\ns_lshl_b32 s43, s41, 2\ns_add_u32 s42, s42, s43\ns_mul_i32 s42, s42, 50")
        S("s_lshr_b32 s43, s40, 1\ns_lshl_b32 s44, s41, 1\ns_sub_u32 s43, s43, s44\ns_sub_u32 s43, s43, 2\ns_and_b32 s43, s43, 7")
        S("s_add_u32 s42, s42, s43\ns_lshl_b32 s42, s42, 10")
        S("s_and_b32 s44, s40, 1\ns_lshl_b32 s44, s44, 9\ns_add_u32 s42, s42, s44")
        S("s_lshl_b32 s44, s3, 15\ns_add_u32 s42, s42, s44")
        S(f"v_and_b32 v145, 31, v{VL}\nv_lshlrev_b32 v145, 4, v145")
        S(f"v_lshrrev_b32 v146, 5, v{VL}\nv_lshl_add_u32 v145, v146, 13, v145")
        S("s_cmp_ge_u32 s43, 6\ns_cselect_b32 s44, 32, 0\ns_cmp_eq_u32 s3, 0\ns_cselect_b32 s44, 64, s44\ns_cselect_b32 s43, 0, 6144")
        S(f"v_cmp_gt_u32 vcc, s44, v{VL}\nv_mov_b32 v146, 0x7ffffff0")
        S.wait("lg", "go")
        S("v_cndmask_b32 v146, v146, v145, vcc")
        S.mem("vm", f"buffer_store_dwordx4 v[128:131], v145, {srdt(S_AD)}, s42 offen sc1", "pst")
        S("s_add_u32 s42, s42, 16384\ns_sub_u32 s42, s42, s43")
        S.mem("vm", f"buffer_store_dwordx4 v[132:135], v146, {srdt(S_AD)}, s42 offen sc1", "pst")

    def ws_loads(lab):
        S(f"s_cmp_lt_u32 s40, 28\ns_cselect_b32 s44, s3, 0\ns_cmp_eq_u32 s44, 2\ns_cbranch_scc0 {lab}")
        S("s_mov_b32 s43, 0")
        for J in range(1, 7):
            S(f"s_cmp_ge_u32 s40, {J*(J+1)//2}\ns_cselect_b32 s43, {J}, s43")
        S("s_add_u32 s42, s43, 1\ns_mul_i32 s42, s42, s43\ns_lshr_b32 s42, s42, 1\ns_sub_u32 s42, s40, s42")
        S(f"v_and_b32 v24, 3, v{VL}\nv_mul_u32_u24 v24, 25, v24\nv_bfe_u32 v25, v{VL}, 2, 2\nv_add_u32 v24, v24, v25")
        S(f"v_lshl_add_u32 v24, s43, 2, v24")
        S(f"v_lshrrev_b32 v26, 4, v{VL}\nv_lshl_add_u32 v26, s42, 2, v26")
        S(f"v_lshl_add_u32 v25, s43, 2, v25")
        S("v_max_u32 v25, v25, v26\nv_cmp_gt_u32 vcc, 25, v25")
        S("v_mul_u32_u24 v25, 100, v26\nv_add_lshl_u32 v25, v25, v24, 1")
        S("v_mul_u32_u24 v27, 100, v24\nv_add_lshl_u32 v27, v27, v26, 1")
        S("v_mov_b32 v24, 0x7ff00000\nv_cndmask_b32 v25, v24, v25, vcc\nv_cndmask_b32 v27, v24, v27, vcc")
        S("s_cmp_eq_u32 s42, s43\ns_cselect_b32 s44, 0x100000, 0")
        S.srd(S_T0, P_WP, 20000)
        for r in range(4):
            S(f"s_mov_b32 s43, {5000*r}")
            S.mem("vm", f"buffer_load_ushort v{16+r}, v25, {srdt(S_T0)}, s43 offen", "wsl", opt=True)
            S.mem("vm", f"buffer_load_ushort v{20+r}, v27, {srdt(S_T0)}, s44 offen offset:{50*r}", "wsl", opt=True)
        S(f"{lab}:")

    def ws_store(lab):
        S(f"s_cmp_lt_u32 s40, 28\ns_cselect_b32 s44, s3, 0\ns_cmp_eq_u32 s44, 2\ns_cbranch_scc0 {lab}")
        S.wait("vm", "wsl", local=True)
        for r in range(8): S(f"v_lshlrev_b32 v{16+r}, 16, v{16+r}")
        for r in range(4): S(f"v_add_f32 v{16+r}, v{16+r}, v{20+r}")
        S.srd(S_T0, P_WS, 4 * 32768, WS_WS)
        S("s_lshl_b32 s44, s41, 15\ns_lshl_b32 s43, s40, 10\ns_add_u32 s44, s44, s43")
        S.mem("vm", f"buffer_store_dwordx4 v[16:19], v{ADV}, {srdt(S_T0)}, s44 offen sc1", "wss", opt=True)
        S(f"{lab}:")

    def ws_sig(lab):
        S(f"s_cmp_lg_u32 s3, 2\ns_cbranch_scc1 {lab}")
        S.wait("vm", "wss", local=True)
        S("s_lshl_b32 s42, s41, 6\ns_add_u32 s42, s42, s40\ns_lshl_b32 s42, s42, 4")
        S(f"v_mov_b32 v{D}, s56\nv_lshlrev_b32 v{D+1}, 20, v{VL}")
        S.mem("vm", f"buffer_store_dword v{D}, v{D+1}, {srdt(S_T1)}, s42 offen offset:4 sc1", "sigw", opt=True)
        S(f"{lab}:")

    S(f".globl {NAME}\n.p2align 8\n.type {NAME},@function\n{NAME}:")
    S("s_cmp_ge_u32 s2, 256\ns_cbranch_scc1 L_END")
    stamp(0)
    if OPT["dly"]:
        S(f"s_cmp_lt_u32 s2, 128\ns_cbranch_scc1 L_dl2\ns_mov_b32 s40, {OPT['dly']}\nL_dl1:\ns_sleep 127\ns_sub_u32 s40, s40, 1\ns_cmp_lg_u32 s40, 0\ns_cbranch_scc1 L_dl1\nL_dl2:")
    S("s_load_dwordx16 s[64:79], s[0:1], 0")
    S("s_load_dwordx4 s[80:83], s[0:1], 64")
    S(f"v_lshrrev_b32 v{VW}, 6, v0")
    S(f"v_and_b32 v{VL}, 63, v0")
    if OPT["pfc"]:
        S(f"s_getpc_b64 s[{S_T0}:{S_T0+1}]\nL_PC:\ns_mov_b32 s{S_T0+2}, L_CODE_END-L_PC\ns_mov_b32 s{S_T0+3}, 0x20000")
        S("v_lshrrev_b32 v47, 3, v0\nv_lshlrev_b32 v46, 7, v0\nv_lshl_add_u32 v46, v47, 20, v46\ns_lshr_b32 s44, s2, 3\ns_lshl_b32 s44, s44, 10")
        S(f"buffer_load_dword v47, v46, {srdt(S_T0)}, s44 offen")
    S(f"v_readfirstlane_b32 s3, v{VW}")
    S("s_and_b32 s36, s2, 7\ns_lshl_b32 s36, s36, 3\ns_bfe_u32 s37, s2, 0x30003\ns_add_u32 s36, s36, s37")
    S("s_lshr_b32 s37, s2, 6")
    S("s_lshr_b32 s40, s2, 2\ns_and_b32 s41, s2, 3")
    S(f"v_lshlrev_b32 v{ADV}, 4, v{VL}")
    S("s_lshl_b32 s38, s36, 4\ns_lshl_b32 s39, s3, 17\ns_add_u32 s38, s38, s39")
    S(f"v_lshl_add_u32 v{DMAV}, v{VL}, 10, s38")
    S("s_mul_i32 s45, s37, 24*131072")
    S("s_add_u32 s46, s45, 24*131072")
    S(f"s_mul_i32 s47, s3, 2112\ns_add_u32 s47, s47, {STG}")
    S(f"s_add_u32 s48, s47, {3*STGSZ}")
    S("s_mov_b32 s49, s3")
    S(f"v_and_b32 v44, 15, v{VL}\nv_lshrrev_b32 v45, 4, v{VL}")
    for jj in range(4):
        S(f"v_add_u32 v{40+jj}, {4*jj}, v45\nv_xor_b32 v{40+jj}, v{40+jj}, v44\nv_lshlrev_b32 v{40+jj}, 4, v{40+jj}")
        S(f"v_lshl_add_u32 v{40+jj}, v45, 8, v{40+jj}")
    S("s_lshl_b32 s50, s3, 16")
    S("s_lshl_b32 s51, s3, 14")
    S(f"v_lshlrev_b32 v46, 7, v{VL}")
    S("s_waitcnt lgkmcnt(0)")

    def srds():
        S.srd(S_TAB, P_TAB, 256000)
        S.srd(S_W1, P_W1, 12800 * 1024)
        S.srd(S_DBG, P_DBG, 256)

    def pft():
        S(f"v_mov_b32 v49, 0x7ff00000\nv_cmp_gt_u32 vcc, 32, v{VL}")
        S("s_lshr_b32 s44, s2, 3\ns_lshl_b32 s44, s44, 13\ns_and_b32 s52, s3, 1\ns_lshl_b32 s52, s52, 12\ns_add_u32 s44, s44, s52")
        S("v_cndmask_b32 v48, v49, v46, vcc")
        S.mem("vm", f"buffer_load_dword v47, v48, {srdt(S_TAB)}, s44 offen", "pft")

    def pfw(ph):
        S("s_and_b32 s52, s36, 7\ns_lshl_b32 s52, s52, 16\ns_lshl_b32 s44, s36, 4\ns_add_u32 s52, s52, s44")
        if ph <= 0:
            S(f"v_and_b32 v48, 31, v{VL}\nv_lshlrev_b32 v48, 10, v48\nv_lshrrev_b32 v49, 5, v{VL}\nv_lshl_add_u32 v48, v49, 19, v48")
            S("s_and_b32 s44, s3, 1\ns_lshl_b32 s44, s44, 15\ns_add_u32 s52, s52, s44\ns_add_u32 s52, s52, s45")
            if ph: S(f"s_add_u32 s52, s52, {-ph*4*131072}")
            S.mem("vm", f"buffer_load_dword v47, v48, {srdt(S_W1)}, s52 offen", "pfw")
        else:
            S(f"v_lshlrev_b32 v0, 10, v44\nv_lshl_add_u32 v0, v45, 19, v0\nv_mov_b32 v49, 0x7ff00000\nv_cmp_gt_u32 vcc, 48, v{VL}\ns_nop 1\nv_cndmask_b32 v0, v49, v0, vcc")
            S("s_lshl_b32 s44, s3, 14\ns_add_u32 s52, s52, s44")
            if ph < 6:
                S(f"s_mul_i32 s44, s37, 24*131072\ns_add_u32 s52, s52, s44\ns_add_u32 s52, s52, {ph*4*131072}")
            else:
                S("s_add_u32 s52, s52, 96*131072")
            S.mem("vm", f"buffer_load_dword v{VW}, v0, {srdt(S_W1)}, s52 offen", "pfw")

    def misc_loads():
        S.srd(S_T0, P_WP, 20000)
        S(f"v_mov_b32 v49, 0x7ff00000\nv_cmp_gt_u32 vcc, 3, v{VL}")
        S("s_lshr_b32 s44, s2, 3\ns_lshl_b32 s44, s44, 1\ns_add_u32 s44, s44, s3\ns_mul_i32 s44, s44, 384")
        S("v_cndmask_b32 v48, v49, v46, vcc")
        S.mem("vm", f"buffer_load_dword v47, v48, {srdt(S_T0)}, s44 offen", "pfp")
        S("s_cmp_lt_u32 s2, 8\ns_cselect_b32 s44, s3, 0\ns_cmp_eq_u32 s44, 1\ns_cbranch_scc0 L_nn")
        S("s_memrealtime s[42:43]\ns_waitcnt lgkmcnt(0)\ns_or_b32 s42, s42, 1")
        S(f"v_mov_b32 v48, s42\nv_mov_b32 v49, 0\nv_lshlrev_b32 v50, 20, v{VL}")
        S.mem("vm", f"buffer_atomic_cmpswap v[48:49], v50, {srdt(S_DBG)}, 0 offen sc1", "nn", opt=True)
        S("L_nn:")

    def pfi():
        S(f"v_cmp_gt_u32 vcc, 14, v{VL}\ns_lshl_b32 s44, s2, 2\ns_add_u32 s44, s44, s3\ns_mul_i32 s44, s44, 1600")
        S("v_mov_b32 v49, 0x7ff00000\nv_cndmask_b32 v48, v49, v46, vcc")
        S.mem("vm", f"buffer_load_dword v{VW}, v48, {srdt(S_IDX)}, s44 offen", "pfi")

    def wdma(half, tag, opt=False):
        if half == 0:
            S("s_mov_b32 m0, s47\ns_nop 0")
            S.mem("vm", f"buffer_load_dwordx4 v{DMAV}, {srdt(S_W1)}, s45 offen lds", tag, opt)
        else:
            S("s_add_u32 m0, s47, 1024\ns_add_u32 s44, s45, 65536")
            S.mem("vm", f"buffer_load_dwordx4 v{DMAV}, {srdt(S_W1)}, s44 offen lds", tag, opt)

    def wdma_adv():
        S(f"s_add_u32 s47, s47, {STGSZ}")
        S("s_cmp_eq_u32 s47, s48")
        S(f"s_cselect_b32 s44, {3*STGSZ}, 0\ns_sub_u32 s47, s47, s44")
        S("s_add_u32 s45, s45, 4*131072")
        S("s_cmp_eq_u32 s45, 100*131072\ns_cselect_b32 s49, 0xff, s49")
        S("s_cmp_eq_u32 s45, s46\ns_cselect_b32 s45, 96*131072, s45")

    def wsite(k, tag):
        S.nlab += 1
        lab = f"L_ws{k}_@{S.nlab}"
        S(f"s_cmp_eq_u32 s49, {k & 3}\ns_cbranch_scc0 {lab}")
        wdma(k >> 2, tag, True)
        S(f"{lab}:")

    TSL = [0, 8192, TB1, TB1 + 8192, 8192, TB1, TB1 + 8192, TB1]

    def tdma(nb, j):
        if j % 2 == 0:
            S(f"s_add_u32 m0, s51, {TSL[nb] + (j & ~3) * 1024}")
            S(f"s_add_u32 s52, s50, {(nb * 8 + (j & ~3)) * 1024}")
        S.mem("vm", f"buffer_load_dwordx4 v{40 + (j & 3)}, {srdt(S_TAB)}, s52 offen offset:{(j & 3) * 1024} lds", ("td", nb))

    def consts():
        S.srd(S_AD, P_WS, WS_ADDR_SZ, WS_ADDR)
        S.srd(S_P, P_WS, WS_P_SZ, WS_P)
        S.srd(S_T1, P_WS, 8192, WS_FL)
        S(f"v_and_b32 v13, 31, v{VL}\nv_lshrrev_b32 v14, 2, v13\nv_and_b32 v13, 3, v13")
        S("v_lshlrev_b32 v13, 4, v13\nv_lshl_add_u32 v13, v14, 8, v13")
        S(f"v_lshrrev_b32 v15, 5, v{VL}\nv_lshl_add_u32 v13, v15, 7, v13")
        S(f"v_lshl_add_u32 v13, v{VW}, 14, v13")
        S("v_and_b32 v14, 1, v14")
        S(f"v_lshl_add_u32 v{WA}, v14, 6, v13")
        S(f"v_xor_b32 v{WB}, 64, v{WA}")
        S(f"v_xor_b32 v13, v44, v15\nv_lshlrev_b32 v13, 4, v13\nv_and_b32 v14, 31, v{VL}\nv_lshl_add_u32 v13, v14, 8, v13")
        S(f"v_lshl_add_u32 v32, v{VW}, 14, v13")
        for ks in range(1, 8):
            S(f"v_xor_b32 v{32+ks}, {32*ks}, v32")
        for ks in range(8):
            S(f"v_xor_b32 v{56+ks}, 0x10000, v{32+ks}")
        S(f"v_and_b32 v13, 1, v{VL}\nv_bfe_u32 v14, v{VL}, 4, 1\nv_lshl_add_u32 v13, v13, 1, v14")
        S("v_mul_u32_u24 v13, 2112, v13")
        S(f"v_bfe_u32 v14, v{VL}, 2, 2\nv_lshl_add_u32 v14, v15, 3, v14\nv_lshl_add_u32 v13, v14, 4, v13")
        S(f"v_bfe_u32 v14, v{VL}, 1, 1\nv_lshl_add_u32 v13, v14, 3, v13")
        S(f"v_add_u32 v{TRA}, {STG}, v13")
        S(f"v_mov_b32 v{TRB}, v{TRA}")
        S(f"v_bfe_u32 v13, v{VL}, 4, 1\nv_bfe_u32 v14, v{VL}, 3, 1\nv_cmp_eq_u32 vcc, v13, v14")
        S(f"v_mov_b32 v13, 0x3f80\nv_bfe_u32 v14, v{VL}, 2, 1")
        S("v_cndmask_b32 v13, 0, v13, vcc")
        S("v_cmp_eq_u32 vcc, 0, v14")
        S("s_nop 1")
        S(f"v_cndmask_b32 v{SEL}, 0, v13, vcc")
        S(f"v_xor_b32 v{SEL+1}, v{SEL}, v13")
        S(f"v_mov_b32 v{SEL+2}, v{SEL}\nv_mov_b32 v{SEL+3}, v{SEL+1}")
        S(f"v_and_b32 v13, 3, v{VL}")
        S(f"v_mul_u32_u24 v{IDX}, 0x5555, v13")
        S("s_mov_b32 s53, 0x110000\ns_mov_b32 s54, 0")
        S("s_lshl_b32 s55, s37, 2\ns_add_u32 s55, s55, s3\ns_mul_i32 s55, s55, 51200")
        S("s_mov_b32 s60, s2\ns_mov_b32 s61, 0\nv_mov_b32 v50, 0")

    main_items = S.items
    S.items = []
    S.srd(S_IDX, P_IDX, 4096 * 400)
    prep_loads()
    stamp(4, 2)
    srds()
    misc_loads()
    consts()
    if OPT["early"] == 1: pfw(-2)
    greedy_consts()
    stamp(1); stamp(5, 2)
    greedy()
    prep_store()
    stamp(1, 2)
    S(f"buffer_load_dword v51, v50, {srdt(S_DBG)}, 0 offen sc1")
    for j in range(8): tdma(1, j)
    stamp(2, 2)
    g_code = flat(S.resolve())
    S.items = []
    srds()
    S.srd(S_IDX, P_IDX, 4096 * 400)
    consts()
    pft(); pfw(0)
    S("s_sub_u32 s50, s50, 0x20000\ns_sub_u32 s51, s51, 0x8000\ns_sub_u32 s47, s47, 4224\ns_mov_b32 s39, 2")
    S(f"v_subrev_u32 v{DMAV}, 0x40000, v{DMAV}")
    stamp(3, 2)
    S("L_ld:")
    for j in range(8): tdma(0, j)
    wdma(0, None); wdma(1, None)
    S("s_add_u32 s50, s50, 0x20000\ns_add_u32 s51, s51, 0x8000\ns_add_u32 s47, s47, 4224")
    S(f"v_add_u32 v{DMAV}, 0x40000, v{DMAV}")
    S("s_sub_u32 s39, s39, 1\ns_cmp_lg_u32 s39, 0\ns_cbranch_scc1 L_ld")
    S("s_sub_u32 s50, s50, 0x20000\ns_sub_u32 s51, s51, 0x8000\ns_sub_u32 s47, s47, 4224")
    S(f"v_subrev_u32 v{DMAV}, 0x40000, v{DMAV}")
    stamp(1); stamp(4, 2)
    if OPT["early"] == 2: pfw(-2)
    S(f"buffer_load_dword v51, v50, {srdt(S_DBG)}, 0 offen sc1")
    for j in range(8): tdma(1, j)
    stamp(1, 2)
    S(f"s_waitcnt vmcnt({10 if OPT['early'] == 2 else 9})")
    stamp(2, 2)
    l_code = flat(S.resolve())
    S.items = main_items
    S("s_cmp_ge_u32 s3, 2\ns_cbranch_scc1 L_loader")
    for x in g_code: S(x)
    S("s_branch L_join\nL_loader:")
    for x in l_code: S(x)
    S("L_join:")
    S.mem("vm", "", "nld")
    for j in range(8): S.mem("vm", "", ("td", 1))
    wdma_adv()
    S("s_barrier")
    stamp(2)

    def adload(c):
        r = AD + (c & 3) * 4
        S.mem("vm", f"buffer_load_dwordx4 v[{r}:{r+3}], v{ADV}, {srdt(S_AD)}, s55 offen offset:{(c & 3) * 1024} sc1", ("ad", c))
        if (c & 3) == 3:
            S("s_add_u32 s55, s55, 4096")

    def trread(ks, half, tag):
        r = AF + ks * 4 + half * 2
        S.mem("lg", f"ds_read_b64_tr_b16 v[{r}:{r+1}], v{TRA} offset:{ks*256 + half*64}", tag)

    def tr_advance():
        S(f"s_add_u32 s54, s54, {STGSZ}")
        S(f"s_cmp_eq_u32 s54, {3*STGSZ}")
        S("s_cselect_b32 s54, 0, s54")
        S(f"v_add_u32 v{TRA}, s54, v{TRB}")

    def tread(nb, ks):
        if ks == 0 and nb >= 1:
            S.wait("vm", ("td", nb))
        k = nb * 8 + ks
        S.mem("lg", f"ds_read_b128 a[{4*k}:{4*k+3}], v{(56 if TSL[nb] >= TB1 else 32)+ks} offset:{TSL[nb] & 0xffff}", ("tr", nb, ks))

    for ks in range(8):
        for h in range(2): trread(ks, h, ("af", 0, ks))
        tread(0, ks)
    tr_advance()

    OFF = 38
    G0 = -6
    NT = 6 * 32 + 8

    def C(tile, i):
        d = D + (tile & 1) * 16 + (i >> 2) * 8
        i &= 3
        S(f"v_cvt_pk_bf16_f32 v{d+i}, v{d+2*i}, v{d+2*i+1}")

    def W(tile, h, tag):
        d = D + (tile & 1) * 16 + h * 8
        S.mem("lg", f"ds_write_b128 v{WB if h else WA}, v[{d}:{d+3}] offset:{(tile & 7)*2048}", tag)

    def U(gt):
        if not (G0 + 4 <= gt < NT): return
        c = gt >> 2
        if gt % 32 == 0:
            S("s_xor_b32 s53, s53, 0x10000\ns_and_b32 s53, s53, 0x10000")
        if (gt & 3) == 0:
            S.wait("vm", ("ad", c))
        a = AD + (c & 3) * 4 + (gt & 3)
        S(f"v_add_u32_sdwa v{UA}, v{a}, s53 dst_sel:DWORD dst_unused:UNUSED_PAD src0_sel:WORD_0 src1_sel:DWORD")
        S(f"v_add_u32_sdwa v{UA+1}, v{a}, s53 dst_sel:DWORD dst_unused:UNUSED_PAD src0_sel:WORD_1 src1_sel:DWORD")

    def R(gt):
        if not (G0 + 3 <= gt < NT): return
        g = G + (gt & 3) * 8
        S.mem("lg", f"ds_read_b128 v[{g}:{g+3}], v{UA}", ("g", gt))
        S.mem("lg", f"ds_read_b128 v[{g+4}:{g+7}], v{UA+1}", ("g", gt))

    def SM(gt):
        if not (G0 <= gt < NT): return
        S.wait("lg", ("g", gt))
        g = G + (gt & 3) * 8
        a = ACC + ((gt & 31) + (24 if gt >= 192 else 0)) * 4
        S(f"v_smfmac_f32_16x16x64_bf16 v[{a}:{a+3}], v[{SEL}:{SEL+3}], v[{g}:{g+7}], v{IDX}")

    def M(p, nb, ks):
        if p is None: return
        if p == 0:
            S.wait("lg", ("tr", nb, ks))
        if nb == 0:
            S.wait("lg", ("af", p, ks))
        d = D + (nb & 1) * 16
        k = nb * 8 + ks
        c = "0" if ks == 0 else f"v[{d}:{d+15}]"
        S(f"v_mfma_f32_32x32x16_bf16 v[{d}:{d+15}], v[{AF+4*ks}:{AF+4*ks+3}], a[{4*k}:{4*k+3}], {c}")

    def pk(tq, i):
        a = ACC + tq * 16
        S(f"v_cvt_pk_bf16_f32 v{a+i}, v{a+2*i}, v{a+2*i+1}")

    LP, FA, FB, F6R = ACC, ACC + 4, ACC + 8, ACC + 12
    DT = [ACC + 16, ACC + 20, ACC + 24, ACC + 28]
    IXR = ACC + 32
    IXV, STV = TRB, DMAV
    TMP = ACC + 88

    def wsreg(k):
        return 64 + 4 * k if k < 16 else 16 + 4 * (k - 16)

    def pnn_consts(part):
        t0, t1, t2 = DT[0], DT[0] + 1, DT[0] + 2
        if part == 0:
            S(f"v_and_b32 v{t0}, 15, v{VL}\nv_lshrrev_b32 v{t1}, 4, v{VL}\nv_and_b32 v{t2}, 3, v{VL}")
            S(f"s_add_u32 s57, s51, {TB1}\ns_mul_i32 s58, s3, 9216")
        elif part <= 4:
            jj = part - 1
            r = LP + jj
            S(f"v_add_u32 v{r}, {4*jj}, v{t1}\nv_xor_b32 v{r}, v{r}, v{t0}\nv_lshlrev_b32 v{r}, 4, v{r}")
            S(f"v_add_u32 v{r}, {3072 - 1024*jj}, v{r}")
        elif part <= 12:
            ks, hf = (part - 5) >> 1, (part - 5) & 1
            a, b, c = FA + ks, FB + ks, F6R + ks
            if hf == 0:
                S(f"v_add_u32 v{a}, {4*ks}, v{t1}")
                S(f"v_xor_b32 v{c}, v{a}, v{t2}\nv_xor_b32 v{a}, v{a}, v{t0}")
                S(f"v_lshlrev_b32 v{a}, 4, v{a}\nv_lshlrev_b32 v{c}, 4, v{c}")
            else:
                S(f"v_lshl_add_u32 v{a}, v{t0}, 8, v{a}\nv_lshl_add_u32 v{c}, v{t2}, 8, v{c}")
                S(f"v_add_u32 v{b}, s58, v{a}\nv_add_u32 v{c}, s58, v{c}\nv_add_u32 v{a}, s57, v{a}")
        else:
            S(f"v_cmp_gt_u32 vcc, 4, v{t0}\nv_mov_b32 v{t2}, 0x100000")
            S(f"s_sub_u32 s{S_TAB}, s{P_TAB}, 3072\ns_subb_u32 s{S_TAB+1}, s{P_TAB+1}, 0")
            S(f"s_mov_b32 s{S_TAB+2}, {256000 + 3072}\ns_mov_b32 s{S_TAB+3}, 0x20000")
            for ks in range(4):
                S(f"v_cndmask_b32 v{F6R+ks}, v{t2}, v{F6R+ks}, vcc")

    def ixreg(bi, I):
        return IXR + 4 * ((bi * 7 + I) % 14)

    def ixload(bi, I):
        r = ixreg(bi, I)
        if I < 6:
            S.mem("vm", f"buffer_load_dwordx4 v[{r}:{r+3}], v{IXV}, {srdt(S_IDX)}, s59 offen offset:{400*bi + 16*I}", ("ix", bi, I))
        else:
            S.mem("vm", f"buffer_load_dword v{r}, v{IXV}, {srdt(S_IDX)}, s59 offen offset:{400*bi + 96}", ("ix", bi, I))

    def pdma(bi, I, jj):
        r = ixreg(bi, I) + jj
        if jj == 0:
            if bi > 0: S.wait("lg", ("er", bi - 1, I))
            S.wait("vm", ("ix", bi, I))
            S(f"s_add_u32 m0, s57, {I*4096}" if I < 4 else f"s_add_u32 m0, s58, {(I-4)*4096}")
        S(f"v_lshl_add_u32 v{r}, v{r}, 8, v{LP+jj}")
        S.mem("vm", f"buffer_load_dwordx4 v{r}, {srdt(S_TAB)}, 0 offen offset:{jj*1024} lds", ("pd", bi, I))

    def pdma_rb(bi, I):
        for jj in range(4 if I < 6 else 1): pdma(bi, I, jj)

    def store_setup():
        S(f"v_and_b32 v{STV}, 15, v{VL}\nv_lshlrev_b32 v{STV}, 4, v{STV}")
        S(f"v_bfe_u32 v0, v{VL}, 4, 1\nv_lshl_add_u32 v{STV}, v0, 15, v{STV}")
        S(f"v_lshrrev_b32 v0, 5, v{VL}\nv_lshl_add_u32 v{STV}, v0, 9, v{STV}")
        S("s_lshl_b32 s45, s37, 22\ns_lshl_b32 s46, s36, 16\ns_add_u32 s45, s45, s46")
        S("s_lshl_b32 s46, s3, 13\ns_add_u32 s45, s45, s46")
        S("s_lshl_b32 s46, s37, 1\ns_add_u32 s46, s46, 2")

    def pstore(tq, h):
        if h == 0:
            S(f"s_add_u32 s47, s46, {tq}\ns_and_b32 s47, s47, 7\ns_lshl_b32 s47, s47, 10\ns_add_u32 s47, s47, s45")
        a = ACC + 16 * tq + 4 * h
        S.mem("vm", f"buffer_store_dwordx4 v[{a}:{a+3}], v{STV}, {srdt(S_P)}, s47 offen offset:{256*h} sc1", "pstore")

    def ereg(bi, I, ks):
        return (bi & 1) * 112 + (I * 4 + ks) * 4

    def eread(bi, I, ks):
        if ks == 0:
            S.wait("vm", ("pd", bi, I))
        a = ereg(bi, I, ks)
        if I < 4: adr, off = FA + ks, I * 4096
        elif I < 6: adr, off = FB + ks, (I - 4) * 4096
        else: adr, off = F6R + ks, 8192
        S.mem("lg", f"ds_read_b128 a[{a}:{a+3}], v{adr} offset:{off}", ("er", bi, I))

    def wsdma(i):
        if i == 0:
            S.srd(S_T0, P_WS, 4 * 32768, WS_WS)
            S(f"s_lshl_b32 s48, s37, 15\ns_mul_i32 s44, s3, 7168\ns_add_u32 s48, s48, s44\ns_add_u32 s49, s44, {STG}")
        if i % 4 == 0:
            S(f"s_add_u32 m0, s49, {i*1024}\ns_add_u32 s50, s48, {i*1024}")
        S.mem("vm", f"buffer_load_dwordx4 v{ADV}, {srdt(S_T0)}, s50 offen offset:{(i & 3)*1024} sc1 lds", "wsd")

    def wsread(k):
        r = wsreg(k)
        S.mem("lg", f"ds_read_b128 v[{r}:{r+3}], v{TRA} offset:{1024*k}", ("ws", k))

    J = {}

    def job(pi, gap, f):
        J.setdefault((pi, gap), []).append(f)

    def gjob(seg, g, f):
        job(seg * 32 + g // 2, g & 1, f)

    PREV = {4: 1, 5: 2, 6: 3, 7: 5}

    def tdj(nb, j):
        if j == 0 and nb >= 4: S.wait("lg", ("tr", PREV[nb], 7))
        tdma(nb, j)
    plan = {1: (None, 4), 2: (0, 10), 3: (2, 14), 4: (7, 20), 5: (13, 26), 6: (17, 34), 7: (29, 44)}
    for nb, (gd, gr) in plan.items():
        if gd is not None:
            for n in range(8): gjob(0, gd + n // 4, lambda nb=nb, n=n: tdj(nb, n))
        for n in range(8): gjob(0, gr + n // 4, lambda nb=nb, n=n: tread(nb, n))
    for k in range(8): gjob(0, [20, 22, 24, 26, 32, 34, 36, 38][k], lambda k=k: wsite(k, ("dma", 1)))
    gjob(0, 45, wdma_adv)
    job(19, 1, lambda: ws_loads("L_wsl"))
    job(24, 2, lambda: ws_store("L_wss"))
    job(31, 2, lambda: ws_sig("L_wsg"))

    def pfl_setup():
        S("s_and_b32 s39, s36, 7\ns_lshl_b32 s39, s39, 16\ns_lshl_b32 s44, s36, 4\ns_add_u32 s39, s39, s44\ns_lshl_b32 s44, s3, 14\ns_add_u32 s39, s39, s44")
        S(f"v_and_b32 v0, 0x30, v{VL}\nv_lshlrev_b32 v0, 24, v0\nv_lshl_add_u32 v0, v{VL}, 10, v0\nv_add_u32 v0, s39, v0")
        S(f"s_mul_i32 s39, s37, 24*131072\ns_add_u32 s39, s39, {(16 if OPT['early'] else 8)*131072}")

    def pfl():
        S.mem("vm", f"buffer_load_dword v{VW}, v0, {srdt(S_W1)}, s39 offen", "pfl")
        S("s_add_u32 s39, s39, 4*131072\ns_cmp_eq_u32 s39, s46\ns_cselect_b32 s39, 96*131072, s39")
    job(OPT["pfw"], 1, pfl_setup)
    npf = (1 if OPT["bc"] else 2) if not OPT["early"] else 0
    job(28, 1, lambda: ([pfl() for _ in range(npf)], pfi()))
    for seg in range(1, 6): job(seg * 32 + OPT["pfl"], 1, pfl)

    def nonce():
        S.wait("vm", "nld")
        S("v_readfirstlane_b32 s56, v51")
        S("s_cmp_eq_u32 s56, 0\ns_cbranch_scc1 L_fb_non")
        S("L_nond:")
        COLD.append(f"""L_fb_non:
s_memrealtime s[42:43]
s_waitcnt lgkmcnt(0)
s_or_b32 s42, s42, 1
v_mov_b32 v48, s42
v_mov_b32 v49, 0
v_lshlrev_b32 v51, 20, v{VL}
buffer_atomic_cmpswap v[48:49], v51, {srdt(S_DBG)}, 0 offen sc0 sc1
s_waitcnt vmcnt(0)
v_readfirstlane_b32 s56, v48
s_nop 3
s_cmp_eq_u32 s56, 0
s_cselect_b32 s56, s42, s56
s_branch L_nond""")
    job(OPT["sg1"], 2, nonce)

    def sig1():
        S("s_cmp_ge_u32 s3, 2\ns_cbranch_scc1 L_sig1")
        S("s_lshl_b32 s42, s41, 6\ns_add_u32 s42, s42, s40\ns_lshl_b32 s42, s42, 4\ns_lshl_b32 s43, s3, 3\ns_add_u32 s42, s42, s43")
        S(f"v_mov_b32 v48, s56\nv_lshlrev_b32 v49, 20, v{VL}")
        S.mem("vm", f"buffer_store_dword v48, v49, {srdt(S_T1)}, s42 offen sc1", "sig1", opt=True)
        S("L_sig1:")
    job(OPT["sg1"], 2, sig1)
    for n in range(32):
        r = ACC + 4 * (31 - n)
        job(8 + n // 2, n & 1, lambda r=r: S(f"v_mov_b64 v[{r}:{r+1}], 0\nv_mov_b64 v[{r+2}:{r+3}], 0"))

    def ginit():
        for r in range(G, G + 32, 2): S(f"v_mov_b64 v[{r}:{r+1}], 0")
        S(f"v_mov_b32 v{UA}, 0x100000\nv_mov_b32 v{UA+1}, 0x100000")
        for t in range(G0, G0 + 3): S.mem("lg", "", ("g", t))
    job(30, 1, ginit)

    def poll1_issue():
        S("s_cmp_lg_u32 s3, 1\ns_cbranch_scc1 L_p1i\ns_lshl_b32 s43, s37, 10")
        S.mem("vm", f"buffer_load_dwordx3 v[52:54], v{ADV}, {srdt(S_T1)}, s43 offen sc1", "p1", opt=True)
        S("L_p1i:")
    job(23, 1, poll1_issue)

    def bar1():
        S("s_cmp_lg_u32 s3, 1\ns_cbranch_scc1 L_poll1d")
        S(f"s_mov_b32 s42, {OPT['spin1']}\ns_lshl_b32 s43, s37, 10")
        S("L_poll1:")
        S("s_waitcnt vmcnt(0)")
        S("v_xor_b32 v52, s56, v52\nv_xor_b32 v54, s56, v54\nv_or_b32 v52, v52, v54\nv_cmp_eq_u32 vcc, 0, v52")
        S("s_nop 1\ns_cmp_eq_u64 vcc, -1\ns_cbranch_scc1 L_poll1d")
        S(f"s_sleep 4\nbuffer_load_dwordx3 v[52:54], v{ADV}, {srdt(S_T1)}, s43 offen sc1")
        S("s_sub_u32 s42, s42, 1\ns_cmp_lg_u32 s42, 0\ns_cbranch_scc1 L_poll1")
        S("s_branch L_fb1")
        S("L_poll1d:")

        def fb1():
            st, OPT["stamp"] = OPT["stamp"], 0
            S("L_fb1:\ns_waitcnt vmcnt(0) lgkmcnt(0)\ns_mov_b32 s41, s37\ns_mov_b32 s40, 0")
            S("L_fb1a:\ns_mov_b32 s3, 0")
            S("L_fb1b:")
            prep_loads(); greedy_consts(); greedy(); prep_store()
            S("s_waitcnt vmcnt(0) lgkmcnt(0)\ns_add_u32 s3, s3, 1\ns_cmp_lt_u32 s3, 2\ns_cbranch_scc1 L_fb1b")
            ws_loads("L_fb1c"); ws_store("L_fb1d")
            S("s_waitcnt vmcnt(0)\ns_add_u32 s40, s40, 1\ns_cmp_lt_u32 s40, 64\ns_cbranch_scc1 L_fb1a")
            S("s_mov_b32 s3, 1\ns_lshl_b32 s43, s37, 10")
            S("v_mov_b32 v52, s56\nv_mov_b32 v53, s56\nv_mov_b32 v54, s56")
            S(f"buffer_store_dwordx3 v[52:54], v{ADV}, {srdt(S_T1)}, s43 offen sc1")
            for r in range(ACC, ACC + 64, 2): S(f"v_mov_b64 v[{r}:{r+1}], 0")
            S("s_waitcnt vmcnt(0)\ns_branch L_poll1d")
            OPT["stamp"] = st
        COLD.append("\n".join(sub(fb1)))
        S.wait("vm", ("dma", 1))
        S("s_barrier")
        for c in range(3): adload(c)
        if OPT["pfa"]:
            S("s_and_b32 s42, s36, 7\ns_mul_i32 s42, s42, 5888\ns_add_u32 s42, s42, s55\ns_add_u32 s42, s42, 4096")
            S(f"v_lshlrev_b32 v50, 7, v{VL}\nv_mov_b32 v51, 0x7ff00000\nv_cmp_gt_u32 vcc, 46, v{VL}")
            S("s_nop 1\nv_cndmask_b32 v50, v51, v50, vcc")
            S.mem("vm", f"buffer_load_dword v{VW}, v50, {srdt(S_AD)}, s42 offen sc1", "pfa")
    job(27, 2, bar1)
    if OPT["bc"]:
        for p in range(1, 6):
            for k in range(8): job(p * 32 + [4, 6, 8, 10, 12, 14, 16, 18][k] + OPT["wo"], 1, lambda k=k, p=p: wsite(k, ("dma", p + 1)))
            job(p * 32 + 19 + OPT["wo"], 1, wdma_adv)

            def barc(p=p):
                S.wait("vm", ("dma", p + 1))
                S("s_barrier")
            job(p * 32 + 26, 2, barc)
    else:
        for k in range(8): job([23, 28, 24, 25, 26, 29, 30, 31][k] if OPT["early"] else 28 + k // 2, 0 if OPT["early"] else 2 + (k & 1), lambda k=k: wsite(k, ("dma", 2)))
        job(31, 3, wdma_adv)
        for p in range(1, 6):
            for k in range(8): job(p * 32 + 2 + 4 * k, 1, lambda k=k, p=p: wsite(k, ("dma", p + 2)))
            job(p * 32 + 31, 1, wdma_adv)
    B7 = 6 * 32
    def pollw0():
        S("s_lshl_b32 s43, s37, 10")
        S.mem("vm", f"buffer_load_dword v0, v{ADV}, {srdt(S_T1)}, s43 offen offset:4 sc1", "pw")

    def pollw():
        S.wait("vm", "pw")
        S(f"s_mov_b32 s42, {OPT['spinw']}")
        S("L_pollw:")
        S("v_cmp_eq_u32 vcc, s56, v0")
        S("s_nop 1\ns_cmp_eq_u64 vcc, -1\ns_cbranch_scc1 L_pollwd")
        S(f"s_sleep 4\nbuffer_load_dword v0, v{ADV}, {srdt(S_T1)}, s43 offen offset:4 sc1")
        S("s_waitcnt vmcnt(0)\ns_sub_u32 s42, s42, 1\ns_cmp_lg_u32 s42, 0\ns_cbranch_scc1 L_pollw")
        S("L_pollwd:")
    job(B7 + 0, 1, pollw0)
    job(B7 + 6, 0, pollw)
    job(B7 + 6, 1, store_setup)
    for i in range(7): job(B7 + 7 + i, 1, lambda i=i: wsdma(i)) if i < 3 else job(B7 + 10, 1, lambda i=i: wsdma(i)) if i == 3 else job(B7 + 7 + i, 1, lambda i=i: wsdma(i))
    for tq in range(6):
        base = B7 + 4 * tq + 10
        slots = [(base, 1), (base, 1), (base, 1), (base, 2), (base + 1, 0), (base + 1, 2), (base + 2, 1), (base + 2, 1)]
        for i in range(8): job(*slots[i], lambda tq=tq, i=i: pk(tq, i))
        job(base + 2, 1, lambda tq=tq: pstore(tq, 0))
        job(base + 4, 1, lambda tq=tq: pstore(tq, 1))
    for part in range(14):
        job(B7 + 19 + part, 2 if part % 2 else 0, lambda part=part: pnn_consts(part))

    def ixsetup():
        S(f"v_lshrrev_b32 v{IXV}, 4, v{VL}\nv_mul_u32_u24 v{IXV}, 100, v{IXV}")
        S("s_lshl_b32 s59, s60, 4\ns_lshl_b32 s44, s3, 2\ns_add_u32 s59, s59, s44\ns_mul_i32 s59, s59, 400")
        S(f"v_add_u32 v{TRA}, {STG}, v{ADV}")
    job(B7 + 8, 2, ixsetup)
    for I in range(4): job(B7 + 23 + I, 1, lambda I=I: ixload(0, I))
    for I in range(4, 8): job(B7 + 23 + I, 1, lambda I=I: ixload(I // 7, I % 7))
    B8 = 7 * 32
    for I in range(1, 5): job(B8 + 0, 1, lambda I=I: ixload(1, I))
    for I in range(5, 7): job(B8 + 4, 1, lambda I=I: ixload(1, I))
    for k in range(16): job(B8 + 3 + k // 4, 0, lambda k=k: wsread(15 - k))
    for I in range(4): job(B8 + 5 + I, 3, lambda I=I: pdma_rb(0, I))

    last_pair = NT - 1 + OFF
    GO_P = {0: 0, 1: 1, 2: 2, 3: 3, 4: 4, 5: 5, 6: 6, 7: None}
    for pi in range(0, last_pair + 1):
        seg, gi = pi >> 5, pi & 31
        nb, j = gi >> 2, gi & 3
        p = GO_P[seg]
        if gi == 0:
            S.mark(("seg", seg))
            if seg == 6: stamp(1, 5); stamp(3)
            if seg == 7: stamp(2, 5); stamp(4)
        if seg == 0 and gi in (0, 4, 12, 20, 28): stamp({0: 1, 4: 2, 12: 3, 20: 4, 28: 5}[gi], 3)
        if seg == 7 and gi in (3, 6, 9): stamp({3: 3, 6: 4, 9: 5}[gi], 5)
        if p is not None: Tl = p * 8 + nb - 1
        else: Tl = 55 if (seg == 7 and nb == 0) else -1
        cv = 0 <= Tl < 56
        if nb == 0:
            sch = {0: (["C0"], ["C1", "C2", "C3", "C4"], ["C5"]), 1: (["C6"], ["W0"], ["C7"]), 2: ([], ["W1"], []), 3: ([], [], [])}
        elif nb == 1:
            sch = {0: (["C0"], ["C1", "C2", "C3"], ["C4"]), 1: (["C5"], ["C6", "C7"], []), 2: ([], ["W0"], []), 3: ([], ["W1"], [])}
        else:
            sch = {0: (["C0"], ["C1", "C2", "C3"], ["C4"]), 1: (["C5"], ["W0"], ["C6"]), 2: (["C7"], [], []), 3: ([], ["W1"], [])}
        ga_, gb_, gs_ = sch[j]
        if seg == 0 and j == 0:
            ga_, gb_ = [], ga_ + gb_

        def do(ops):
            if not cv: return
            for o in ops:
                if o[0] == "C": C(Tl, int(o[1]))
                else: W(Tl, int(o[1]), ("w", Tl))

        def jobs(gap):
            for f in J.pop((pi, gap), []): f()

        tr = nb == 7 and p is not None and p < 6
        if seg == 7 and gi == 0: S("s_nop 7")
        M(p, nb, 2 * j)
        R(pi + 3 - OFF)
        if tr: trread(2 * j, 0, ("af", p + 1, 2 * j)); trread(2 * j, 1, ("af", p + 1, 2 * j))
        U(pi + 4 - OFF)
        do(ga_)
        jobs(0)
        M(p, nb, 2 * j + 1)
        do([o for o in gb_ if o[0] == "W"])
        if tr: trread(2 * j + 1, 0, ("af", p + 1, 2 * j + 1)); trread(2 * j + 1, 1, ("af", p + 1, 2 * j + 1))
        gt = pi + 4 - OFF
        if -1 <= gt < NT - 16 and (gt & 3) == 3:
            adload((gt >> 2) + 4)
        jobs(1)
        do([o for o in gb_ if o[0] != "W"])
        SM(pi - OFF)
        do(gs_)
        if tr and j == 3: tr_advance()
        jobs(2)
        if seg >= 1 and gi == 2:
            S.wait("lg", ("w", Tl))
            if seg == 7: S.wait("vm", "wsd")
            S("s_barrier")
        if seg >= 1 and gi == 5:
            if p is not None and p < 6 and not OPT["bc"]:
                S.wait("vm", ("dma", p + 1))
            S("s_barrier")
            if p is not None:
                S(f"v_xor_b32 v{WA}, 0x10000, v{WA}\nv_xor_b32 v{WB}, 0x10000, v{WB}")
        jobs(3)
    assert not J, J.keys()
    S.mark(("seg", 8))
    S("s_barrier")
    S("L_RERUN:")
    stamp(6)
    for I in range(4, 7): pdma_rb(0, I)
    S.srd(S_W1, P_WS, 4096, WS_FL + 4096)
    for ks in range(4): eread(0, 0, ks)
    for ks in range(4): eread(0, 1, ks)

    ACr = [1, 2, 13, 14]
    PJ = {k: [] for k in range(112)}
    cap = {}

    def place(t, kind, f, lim=2):
        while cap.get((t, kind), 0) >= lim: t += 1
        cap[(t, kind)] = cap.get((t, kind), 0) + 1
        PJ[t].append(f)
        return t
    col0 = lambda Jc: Jc * (Jc + 1) // 2
    LAT = OPT["lat"]
    t_pd = {(0, I): (-LAT if I < 4 else -1) for I in range(7)}
    t_er = {(0, 0): -1, (0, 1): -1}
    last = {"er": 0, "pd": 0}
    order = [(b, I) for b in range(4) for I in range(7)]
    for (b, I) in order:
        if (b, I) not in t_pd:
            t = max(t_er[(b - 1, I)] + 2, last["pd"])
            for jj in range(4 if I < 6 else 1):
                t = place(t, "pd", lambda b=b, I=I, jj=jj: pdma(b, I, jj), lim=2 if b == 1 else 1)
            last["pd"] = t
            t_pd[(b, I)] = t
        if (b, I) not in t_er:
            t = max(t_pd[(b, I)] + LAT, last["er"], 28 * (b - 1), 0)
            dl = 28 * b + col0(I) - 3
            t = min(t, max(dl, last["er"], 0))
            for ks in range(4):
                t = place(t, "er", lambda b=b, I=I, ks=ks: eread(b, I, ks), lim=2)
            last["er"] = t
            t_er[(b, I)] = t
            assert t < 28 * b + col0(I) or (b, I) in ((0, 2),), (b, I, t)
    for (b, I) in order:
        if b >= 2:
            t = max(t_pd[(b - 2, I)] + 1, 0)
            place(t, "ix", lambda b=b, I=I: ixload(b, I), lim=1)
    for k in range(16, 28): place((k - 16) // 2, "ws", lambda k=k: wsread(k))
    for i in range(16): place(i // 2 + 1, "pk", lambda i=i: pk(6 + i // 8, i % 8))
    place(6, "st", lambda: pstore(6, 0)); place(8, "st", lambda: pstore(6, 1))
    place(10, "st", lambda: pstore(7, 0)); place(12, "st", lambda: pstore(7, 1))

    def sig2():
        S.wait("vm", "pstore")
        S("s_barrier")
        S("s_or_b32 s44, s3, s61\ns_cmp_lg_u32 s44, 0\ns_cbranch_scc1 L_sig2")
        S(f"s_lshl_b32 s44, s2, 4\nv_mov_b32 v{TMP}, s56\nv_lshlrev_b32 v{TMP+1}, 20, v{VL}")
        S.mem("vm", f"buffer_store_dword v{TMP}, v{TMP+1}, {srdt(S_W1)}, s44 offen sc1", "sig2", opt=True)
        S("L_sig2:")
    PJ[OPT["sg2"]].append(sig2)
    FV = TMP + 2
    B1R, W2R = ACC + 96, ACC + 112

    def final_setup():
        S(f"v_and_b32 v{FV}, 7, v{VL}\nv_lshlrev_b32 v{FV}, 4, v{FV}")
        S(f"v_bfe_u32 v{FV+1}, v{VL}, 4, 1\nv_lshl_add_u32 v{FV}, v{FV+1}, 22, v{FV}")
        S(f"v_bfe_u32 v{FV+1}, v{VL}, 3, 1\nv_lshrrev_b32 v{TMP}, 5, v{VL}\nv_lshl_add_u32 v{FV+1}, v{TMP}, 1, v{FV+1}")
        S(f"v_lshl_add_u32 v{FV}, v{FV+1}, 18, v{FV}")
        S(f"s_lshl_b32 s44, s3, 8\nv_lshl_add_u32 v{FV+1}, v{FV+1}, 6, s44")
        S.srd(S_T0, P_B1, 1024)
        S.srd(S_T1, P_W2, 1024)

    def final_setup2():
        for i in range(4):
            S.mem("vm", f"buffer_load_dwordx4 v[{B1R+4*i}:{B1R+4*i+3}], v{FV+1}, {srdt(S_T0)}, 0 offen offset:{16*i}", "b1")
            S.mem("vm", f"buffer_load_dwordx4 v[{W2R+4*i}:{W2R+4*i+3}], v{FV+1}, {srdt(S_T1)}, 0 offen offset:{16*i}", "b1")
        S.srd(S_T0, P_B2, 2)
        S.srd(S_T1, P_OUT, 8192)
        S(f"v_mov_b32 v{TMP}, 0")
        S.mem("vm", f"buffer_load_ushort v{TMP+1}, v{TMP}, {srdt(S_T0)}, 0 offen", "b1")
    PJ[70].append(final_setup); PJ[72].append(final_setup2)

    PF = TMP + 4
    ABR = IXR
    ABL = FR + 512

    def p2loads(opt):
        for i in range(4):
            S.mem("vm", f"buffer_load_dword v{PF+i}, v{ADV}, {srdt(S_W1)}, 0 offen offset:{1024*i} sc1", "p2", opt=opt)
        S.mem("vm", f"buffer_load_dword v{ABR}, v{ABR+1}, {srdt(S_DBG)}, 0 offen offset:32 sc1", "p2", opt=opt)

    def poll2_issue():
        S("s_cmp_lg_u32 s3, 1\ns_cbranch_scc1 L_p2i")
        S(f"v_lshlrev_b32 v{ABR+1}, 2, v{VL}")
        p2loads(True)
        S("L_p2i:")

    def p2check(lab):
        S("s_waitcnt vmcnt(0)")
        for i in range(4): S(f"v_xor_b32 v{PF+i}, s56, v{PF+i}")
        S(f"v_or3_b32 v{PF}, v{PF}, v{PF+1}, v{PF+2}\nv_or_b32 v{PF}, v{PF}, v{PF+3}")
        S(f"v_cmp_eq_u32 vcc, 0, v{PF}")
        S(f"s_nop 1\ns_cmp_eq_u64 vcc, -1\ns_cbranch_scc1 {lab}")

    def poll2():
        S("s_cmp_lg_u32 s3, 1\ns_cbranch_scc1 L_poll2d")
        S(f"s_mov_b32 s42, {OPT['spin2']}\ns_mov_b32 s43, 0")
        S("L_poll2:")
        p2check("L_poll2k")
        S("s_sleep 4")
        p2loads(True)
        S("s_sub_u32 s42, s42, 1\ns_cmp_lg_u32 s42, 0\ns_cbranch_scc1 L_poll2")
        S("s_branch L_fb2")
        S("L_poll2k:")
        S(f"v_writelane_b32 v{ABR}, s43, 8\nv_add_u32 v{ABR+1}, {ABL}, v{ABR+1}")
        S.mem("lg", f"ds_write_b32 v{ABR+1}, v{ABR}", "abw", opt=True)
        S("L_poll2d:")
        S("s_barrier")
        S("s_lshl_b32 s43, s3, 20\ns_lshl_b32 s44, s60, 7\ns_add_u32 s43, s43, s44")
        S(f"s_mov_b32 s{S_P+2}, {WS_P_SZ}")

        def fb2():
            S("L_fb2:\ns_waitcnt vmcnt(0)")
            S("s_and_b32 s42, s2, 31\ns_lshl_b32 s42, 1, s42\ns_lshr_b32 s44, s2, 5\ns_lshl_b32 s44, s44, 2")
            S(f"v_mov_b32 v{PF}, s42\nv_lshlrev_b32 v{PF+1}, 20, v{VL}")
            S(f"buffer_atomic_or v{PF}, v{PF+1}, {srdt(S_DBG)}, s44 offen offset:32 sc0 sc1")
            S("s_waitcnt vmcnt(0)")
            p2loads(False)
            p2check("L_poll2k")
            S(f"s_mov_b32 s43, 1\nv_mov_b32 v{ABR}, 0\ns_branch L_poll2k")
        COLD.append("\n".join(sub(fb2)))

    def fload(t, s):
        S(f"s_add_u32 s52, s43, {t * 32768}" if s == 0 else f"s_add_u32 s52, s52, {2 << 22}")
        a = 8 * t + 4 * s
        S.mem("vm", f"buffer_load_dwordx4 a[{a}:{a+3}], v{FV}, {srdt(S_P)}, s52 offen sc1", ("fl", t))
    PJ[84 + OPT["pk"] - OPT["p2a"]].append(poll2_issue)
    PJ[84 + OPT["pk"]].append(poll2)
    for t in range(8):
        PJ[85 + OPT["pk"] + t] += [lambda t=t: fload(t, 0), lambda t=t: fload(t, 1)]

    pend = []

    def fma_ops():
        d, w, first, fin = pend.pop(0)
        ops = []
        for r in range(4):
            ops.append(f"v_mul_f32 v{ACr[r]}, v{d+r}, v{w+r}" if first else f"v_fmac_f32 v{ACr[r]}, v{d+r}, v{w+r}")
        if fin is not None:
            ops.append(f"v_add_f32 v{ACr[0]}, v{ACr[0]}, v{ACr[1]}")
            ops.append(f"v_add_f32 v{ACr[2]}, v{ACr[2]}, v{ACr[3]}")
            ops.append(f"v_add_f32 v{ACr[0]}, v{ACr[0]}, v{ACr[2]}")
            ops.append(f"v_accvgpr_write_b32 a{252+fin}, v{ACr[0]}")
        return ops

    for gk in range(112):
        bi, k = gk // 28, gk % 28
        I, Jc = BLOCKS[k]
        if k == 0: stamp(2 + bi, 1)
        side = PJ[gk]
        if I == 0:
            S.wait("lg", ("er", bi, Jc))
        d = DT[gk % 4]
        fm = []
        if len(pend) >= 2:
            if gk - 2 < 28: S.wait("lg", ("ws", gk - 2))
            fm = fma_ops()
        for ks in range(4):
            aI, aJ = ereg(bi, I, ks), ereg(bi, Jc, ks)
            c = "0" if ks == 0 else f"v[{d}:{d+3}]"
            S(f"v_mfma_f32_16x16x32_bf16 v[{d}:{d+3}], a[{aI}:{aI+3}], a[{aJ}:{aJ+3}], {c}")
            for _ in range((len(side) + 3 - ks) // (4 - ks)): side.pop(0)()
            for _ in range((len(fm) + 3 - ks) // (4 - ks)): S(fm.pop(0))
        pend.append((d, wsreg(k), k == 0, bi if k == 27 else None))
    for o in fma_ops(): S(o)
    stamp(7)
    X, W2, Y, R0 = 64, 96, ACC + 32, ACC + 64
    S.wait("vm", "b1")
    for t in range(8):
        for r in range(4):
            src = B1R + 2 * t + (r >> 1)
            S(f"v_and_b32 v{X+4*t+r}, 0xffff0000, v{src}" if r & 1 else f"v_lshlrev_b32 v{X+4*t+r}, 16, v{src}")
    for o in fma_ops(): S(o)
    for t in range(8):
        S.wait("vm", ("fl", t))
        S(f"v_smfmac_f32_16x16x64_bf16 v[{X+4*t}:{X+4*t+3}], v[{SEL}:{SEL+3}], a[{8*t}:{8*t+7}], v{IDX}")
        for r in range(4):
            src = W2R + 2 * t + (r >> 1)
            S(f"v_and_b32 v{W2+4*t+r}, 0xffff0000, v{src}" if r & 1 else f"v_lshlrev_b32 v{W2+4*t+r}, 16, v{src}")
    for i in range(4): S(f"v_accvgpr_read_b32 v{R0+i}, a{252+i}")
    for sh in (1, 2, 4, 8):
        S("s_nop 1")
        for i in range(4):
            S(f"v_add_f32_dpp v{R0+i}, v{R0+i}, v{R0+i} row_ror:{sh} row_mask:0xf bank_mask:0xf")
    t0 = R0 + 4
    S(f"v_lshrrev_b32 v{t0}, 4, v{VL}\nv_lshlrev_b32 v{t0}, 6, v{t0}\ns_lshl_b32 s44, s3, 4\ns_add_u32 s44, s44, {FR+256}\nv_add_u32 v{t0}, s44, v{t0}")
    S.mem("lg", f"ds_write_b128 v{t0}, v[{R0}:{R0+3}]", "lpw")
    c1 = -2 * math.sqrt(2 / math.pi) * math.log2(math.e); c2 = c1 * 0.044715
    A0 = t0 + 2
    S(f"s_mov_b32 s42, {f2h(c2)}\nv_mov_b32 v{t0+1}, {f2h(c1)}\nv_mov_b32 v{A0}, 0\nv_mov_b32 v{A0+1}, 0")
    for hh in range(2):
        ks = range(16 * hh, 16 * hh + 16)
        for k in ks: S(f"v_mul_f32 v{Y+k}, v{X+k}, v{X+k}")
        for k in ks: S(f"v_fma_f32 v{Y+k}, v{Y+k}, s42, v{t0+1}")
        for k in ks: S(f"v_mul_f32 v{Y+k}, v{Y+k}, v{X+k}")
        for k in ks: S(f"v_exp_f32 v{Y+k}, v{Y+k}")
        for k in ks: S(f"v_add_f32 v{Y+k}, 1.0, v{Y+k}")
        for k in ks: S(f"v_rcp_f32 v{Y+k}, v{Y+k}")
        for k in ks: S(f"v_mul_f32 v{X+k}, v{X+k}, v{W2+k}")
        for k in ks: S(f"v_fmac_f32 v{A0 + (k & 1)}, v{X+k}, v{Y+k}")
    S(f"v_add_f32 v{A0}, v{A0}, v{A0+1}")
    S("s_nop 1")
    S(f"v_add_f32_dpp v{A0}, v{A0}, v{A0} row_ror:8 row_mask:0xf bank_mask:0xf")
    S(f"v_mov_b32 v{A0+1}, v{A0}")
    S("s_nop 1")
    S(f"v_permlane32_swap_b32 v{A0}, v{A0+1}")
    S(f"v_add_f32 v{A0}, v{A0}, v{A0+1}")
    S(f"v_and_b32 v{t0}, 7, v{VL}\nv_lshlrev_b32 v{t0}, 3, v{t0}\nv_bfe_u32 v{A0+1}, v{VL}, 4, 1\nv_lshl_add_u32 v{t0}, v{A0+1}, 2, v{t0}")
    S(f"s_lshl_b32 s44, s3, 6\ns_add_u32 s44, s44, {FR}\nv_add_u32 v{t0}, s44, v{t0}")
    S.mem("lg", f"ds_write_b32 v{t0}, v{A0}", "dw")
    S.wait("lg", "ALL")
    S("s_barrier")
    S(f"v_lshlrev_b32 v87, 2, v{VL}\nv_add_u32 v87, {ABL}, v87\nds_read_b32 v88, v87")
    S("s_cmp_lg_u32 s3, 0\ns_cbranch_scc1 L_fin")
    S(f"v_and_b32 v84, 15, v{VL}\nv_lshlrev_b32 v85, 2, v84\nv_add_u32 v85, {FR}, v85")
    for k in range(8):
        S(f"ds_read_b32 v{90+k}, v85 offset:{64*k}")
    S(f"v_lshlrev_b32 v89, 16, v{TMP+1}")
    S(f"v_lshlrev_b32 v86, 1, v84\nv_lshrrev_b32 v85, 4, v{VL}\nv_lshl_add_u32 v86, v85, 20, v86")
    S("s_waitcnt lgkmcnt(0)")
    S("v_readlane_b32 s43, v88, 8")
    for k in range(8):
        S(f"v_add_f32 v89, v89, v{90+k}")
    S("s_lshl_b32 s43, s43, 20\ns_lshl_b32 s44, s60, 5\ns_add_u32 s44, s44, s43")
    S("v_cvt_pk_bf16_f32 v89, v89, v89")
    S(f"buffer_store_short v89, v86, {srdt(S_T1)}, s44 offen")
    if OPT["stamp"]:
        S("v_add_f32 v100, v94, v95\nv_add_f32 v101, v96, v97\nv_add_f32 v100, v100, v101")
        S.srd(S_T0, P_WS, 16384, WS_LP)
        S(f"v_lshlrev_b32 v101, 2, v84\nv_lshrrev_b32 v102, 4, v{VL}\nv_lshl_add_u32 v101, v102, 20, v101\ns_lshl_b32 s44, s60, 6")
        S(f"buffer_store_dword v100, v101, {srdt(S_T0)}, s44 offen")
    S("L_fin:")
    S("s_waitcnt lgkmcnt(0)")
    S("v_cmp_ne_u32 vcc, 0, v88\ns_nop 1\ns_and_b32 s43, vcc_lo, 0xff\ns_or_b32 s43, s43, s61\ns_cmp_lg_u32 s43, 0\ns_cbranch_scc1 L_fb3")
    S("L_fin2:")

    def fb3():
        S("L_fb3:\ns_cmp_lg_u32 s61, 0\ns_cbranch_scc1 L_fb3a")
        S("v_accvgpr_write_b32 a250, v88\ns_mov_b32 s61, 1")
        S("L_fb3a:\ns_nop 1\nv_accvgpr_read_b32 v88, a250\ns_nop 1")
        S("v_cmp_ne_u32 vcc, 0, v88\ns_nop 1\ns_and_b32 s43, vcc_lo, 0xff\ns_cmp_eq_u32 s43, 0\ns_cbranch_scc1 L_fin2")
        S("s_ff1_i32_b32 s43, s43\ns_nop 3\nv_readlane_b32 s44, v88, s43\ns_nop 3")
        S("s_ff1_i32_b32 s42, s44\ns_bitset0_b32 s44, s42\ns_mov_b32 m0, s43\ns_nop 3\nv_writelane_b32 v88, s44, m0")
        S("s_lshl_b32 s60, s43, 5\ns_add_u32 s60, s60, s42\ns_nop 1\nv_accvgpr_write_b32 a250, v88")
        S("s_waitcnt vmcnt(0) lgkmcnt(0)\ns_barrier")
        S("s_lshl_b32 s59, s60, 4\ns_lshl_b32 s44, s3, 2\ns_add_u32 s59, s59, s44\ns_mul_i32 s59, s59, 400")
        S(f"s_mov_b32 s{S_P+2}, 0")
        for bi in range(2):
            for I in range(7): ixload(bi, I)
        for k in range(16): wsread(k)
        for I in range(4): pdma_rb(0, I)
        S("s_waitcnt vmcnt(0) lgkmcnt(0)\ns_branch L_RERUN")
    COLD.append("\n".join(sub(fb3)))
    if OPT["stamp"]:
        S("s_memrealtime s[100:101]")
        S("s_waitcnt lgkmcnt(0)")
        S.srd(S_T0, P_WS, 0x20000, WS_ST)
        S("s_lshl_b32 s44, s2, 2\ns_add_u32 s44, s44, s3\ns_lshl_b32 s44, s44, 6")
        S("s_mov_b64 exec, 1\nv_mov_b32 v0, s44")
        for k in range(9): S(f"v_mov_b32 v{16+k}, s{84+2*k}")
        for k in range(3):
            S(f"buffer_store_dwordx4 v[{16+4*k}:{19+4*k}], v0, {srdt(S_T0)}, 0 offen offset:{16*k}")
    S("L_END:\ns_endpgm\nL_CODE_END:")
    for c in COLD: S(c)

    items = S.resolve()
    segs = {}
    cur = -1
    for it in items:
        if isinstance(it, tuple) and it[0] == "mark":
            cur = it[1][1]
            continue
        segs.setdefault(cur, []).append(it)
    norm = lambda x: re.sub(r"_@\d+", "_lp", x)
    body = []
    n = len(segs[1])
    LS = range(1, 6)
    for sg in LS:
        assert len(segs[sg]) == n, (sg, len(segs[sg]), n)
    for i in range(n):
        its = [segs[sg][i] for sg in LS]
        if isinstance(its[0], tuple):
            assert all(x[0] == "wait" and x[1] == its[0][1] for x in its)
            vals = [x[2] for x in its if x[2] is not None]
            body.append(("wait", its[0][1], min(vals) if vals else None))
        else:
            assert all(norm(x) == norm(its[0]) for x in its), its
            body.append(norm(its[0]))
    out = []
    for sg in (-1, 0): out += flat(segs[sg])
    out += ["s_mov_b32 s38, 5", "s_nop 7"]
    if OPT["stamp"] and OPT["sm"] == 0: out += ["s_memrealtime s[94:95]"]
    if OPT["stamp"] and OPT["sm"] == 7: out += ["s_memrealtime s[86:87]", "s_memtime s[88:89]"]
    out += [".p2align 6", "L_LOOP:"]
    out += flat(body)
    out += ["s_sub_u32 s38, s38, 1", "s_cmp_lg_u32 s38, 0", "s_cbranch_scc1 L_LOOP"]
    if OPT["stamp"] and OPT["sm"] == 7: out += ["s_memrealtime s[90:91]", "s_memtime s[92:93]"]
    for sg in (6, 7, 8): out += flat(segs[sg])
    return "\n".join(out).replace("_@", "_")


def main():
    print("; generated by dev/gen6.py - deep_cross_pnn recsys, single fused kernel")
    print(f"; @launch grid=(256,1,1) block=(256,1,1) lds={LDS_SZ}")
    print('.amdgcn_target "amdgcn-amd-amdhsa--gfx950"\n.text')
    print(gen())
    print(f""".section .rodata,"a"
.p2align 6
.amdhsa_kernel {NAME}
  .amdhsa_next_free_vgpr 512
  .amdhsa_next_free_sgpr 102
  .amdhsa_accum_offset 256
  .amdhsa_group_segment_fixed_size 0
  .amdhsa_kernarg_size 80
  .amdhsa_user_sgpr_count 2
  .amdhsa_user_sgpr_kernarg_segment_ptr 1
  .amdhsa_system_sgpr_workgroup_id_x 1
  .amdhsa_float_denorm_mode_32 3
.end_amdhsa_kernel""")


main()
```

```python
import sys, struct, math, re

OPT = dict(stamp=0, dbgt=0, sm=0, spin1=400, spin2=1000, spinw=40000, bc=1, dly=0, pfc=1, pfa=1, pfw=20, pfl=23, wo=0, early=0, sg1=0, sg2=30, pk=0, p2a=10, lat=10, clk=0)
for a in sys.argv[1:]:
    k, v = a.split("=")
    OPT[k] = int(v)

NAME = "standalone__deep_cross_pnn__recsys_kernel"

WS_ADDR = 0
WS_ADDR_SZ = 16 * 50 * 1024
WS_FL = 0x100000
WS_WS = 0x110000
WS_LP = 0x140000
WS_ST = 0x180000
WS_P = 0x200000
WS_P_SZ = 4 * 128 * 4096 * 8

TB1 = 65536
STG = 131072
STGSZ = 8448
GO = 156672
GT = GO + 3584
FR = GT + 2048
LDS_SZ = 163840

WA, WB, TRA, DMAV, ADV, VW, VL = 1, 2, 3, 4, 5, 6, 7
SEL, IDX, UA, TRB = 8, 12, 13, 15
AD, G, D, AF, ACC = 16, 32, 64, 96, 128
S_IDX, S_TAB, S_W1, S_AD, S_P, S_DBG, S_T0, S_T1 = 4, 8, 12, 16, 20, 24, 28, 32
P_IDX, P_TAB, P_WP, P_W1, P_B1, P_W2, P_B2, P_OUT, P_DBG, P_WS = 64, 66, 68, 70, 72, 74, 76, 78, 80, 82
BLOCKS = [(I, J) for J in range(7) for I in range(J + 1)]


def f2h(x):
    return "0x%08x" % struct.unpack("<I", struct.pack("<f", x))[0]


def srdt(s):
    return f"s[{s}:{s+3}]"


class Stream:
    def __init__(self):
        self.items = []
        self.nlab = 0

    def i(self, text):
        for ln in text.split("\n"):
            self.items.append(("i", ln, None, None))

    __call__ = i

    def mem(self, cls, text, tag=None, opt=False):
        self.items.append(("o" if opt else "m", text, cls, tag))

    def wait(self, cls, tag, local=False):
        self.items.append(("l" if local else "w", None, cls, tag))

    def mark(self, name):
        self.items.append(("k", name, None, None))

    def srd(self, d, base, size, off=0):
        if off:
            self.i(f"s_add_u32 s{d}, s{base}, {off}\ns_addc_u32 s{d+1}, s{base+1}, 0")
        else:
            self.i(f"s_mov_b32 s{d}, s{base}\ns_mov_b32 s{d+1}, s{base+1}")
        self.i(f"s_mov_b32 s{d+2}, {size}\ns_mov_b32 s{d+3}, 0x20000")

    def resolve(self):
        out = []
        issued = {"vm": [], "lg": []}
        done = {"vm": 0, "lg": 0}
        for kind, text, cls, tag in self.items:
            if kind == "i":
                out.append(text)
            elif kind == "k":
                out.append(("mark", text))
            elif kind in "mo":
                issued[cls].append((tag, kind == "o"))
                out.append(text)
            else:
                q = issued[cls]
                if tag == "ALL":
                    pos = len(q) - 1
                else:
                    idxs = [i for i, t in enumerate(q) if t[0] == tag]
                    assert idxs, f"wait for unknown tag {tag}"
                    pos = idxs[-1]
                n = sum(1 for t in q[pos + 1:] if not t[1])
                lim = 62 if cls == "vm" else 14
                if pos + 1 <= done[cls]:
                    out.append(("wait", cls, None))
                else:
                    out.append(("wait", cls, min(n, lim)))
                    if kind == "w": done[cls] = pos + 1
        return out


def flat(items):
    out = []
    for it in items:
        if isinstance(it, tuple):
            if it[0] == "wait" and it[2] is not None:
                out.append(f"s_waitcnt {'vmcnt' if it[1] == 'vm' else 'lgkmcnt'}({it[2]})")
        elif it:
            out.append(it)
    return out


def gen():
    S = Stream()
    COLD = []

    def sub(fn):
        keep = S.items
        S.items = []
        fn()
        out = flat(S.resolve())
        S.items = keep
        return out

    def stamp(k, mode=0):
        if OPT["stamp"] and (k in (0, 6, 7) or OPT["sm"] == mode):
            S(f"s_memrealtime s[{84+2*k}:{85+2*k}]")

    def dstamp(k, mode):
        if OPT["stamp"] and OPT["sm"] == mode:
            S(f"s_waitcnt vmcnt(0)\ns_memrealtime s[{84+2*k}:{85+2*k}]")

    GA = 128
    F, F6, TB, PSEL, OB0, OB1, LUT, C257, T, K, M1, M2, TA = 146, 147, 149, 150, 151, 152, 153, 154, 155, 156, 157, 158, 160

    def prep_loads():
        S(f"s_lshl_b32 s42, s3, 2\nv_bfe_u32 v148, v{VL}, 2, 2\nv_add_u32 v148, s42, v148")
        S("s_mul_i32 s42, s41, 96\ns_lshl_b32 s43, s3, 6\ns_add_u32 s42, s42, s43")
        S("v_lshl_add_u32 v144, v44, 2, s42")
        S(f"v_and_b32 v145, 3, v{VL}\nv_lshlrev_b32 v145, 2, v145\nv_add_u32 v145, 384, v145")
        S("v_cmp_gt_u32 vcc, 6, v148")
        S("s_mul_i32 s43, s40, 64*400")
        S("v_cndmask_b32 v144, v145, v144, vcc")
        S(f"v_lshrrev_b32 v145, 5, v{VL}\nv_lshlrev_b32 v145, 5, v145\nv_bfe_u32 v149, v{VL}, 4, 1\nv_add_u32 v145, v145, v149")
        S("v_mul_u32_u24 v145, 400, v145\nv_add_u32 v144, v144, v145")
        S("v_mov_b32 v145, 0x7ffffff0\nv_cmp_gt_u32 vcc, 7, v148")
        S("s_nop 1\nv_cndmask_b32 v144, v145, v144, vcc")
        for n in range(16):
            if n % 4 == 0 and n: S("s_add_u32 s43, s43, 3200")
            S.mem("vm", f"buffer_load_dword v{GA+n}, v144, {srdt(S_IDX)}, s43 offen offset:{(n % 4) * 800}", "prep")

    def greedy_consts():
        S(f"v_and_b32 v{F}, 3, v{VL}")
        S(f"v_lshlrev_b32 v{F6}, 6, v{F}")
        S(f"v_lshrrev_b32 v{T}, 2, v{VL}")
        S(f"s_lshl_b32 s42, s3, 10\ns_add_u32 s42, s42, {GT}")
        S(f"v_lshl_add_u32 v{TB}, v{T}, 6, s42")
        S(f"v_add_u32 v{K}, s42, v{ADV}\nv_mov_b64 v[{TA}:{TA+1}], 0\nv_mov_b64 v[{TA+2}:{TA+3}], 0")
        S.mem("lg", f"ds_write_b128 v{K}, v[{TA}:{TA+3}]", "gz")
        S(f"v_mul_u32_u24 v{PSEL}, 0x010101, v{F}\nv_lshl_or_b32 v{PSEL}, v{F}, 24, v{PSEL}\nv_xor_b32 v{PSEL}, 0x03020100, v{PSEL}")
        S(f"v_cmp_gt_u32 vcc, 7, v148\nv_mov_b32 v{K}, 0x4000")
        S(f"v_lshlrev_b32 v{OB0}, 2, v45\nv_cndmask_b32 v{T}, v{K}, v148, vcc")
        S(f"v_lshl_add_u32 v{OB0}, v{T}, 9, v{OB0}\nv_add_u32 v{OB0}, {GO}, v{OB0}")
        S(f"v_xor_b32 v{OB1}, 0x100, v{OB0}")
        S(f"s_mov_b32 s62, 0x24100400\ns_mov_b32 s63, 0x102\nv_mov_b32 v{LUT}, 0x3c3c3c3c\nv_mov_b32 v{C257}, 0x101")

    TAB = 176
    KK = [156, 164]

    def ga(n):
        r = GA + n
        if n == 0: S.wait("vm", "prep"); stamp(3, 2)
        S(f"v_and_b32 v{T}, 7, v{r}")
        S(f"v_lshrrev_b32 v{r}, 2, v{r}")
        S(f"v_lshlrev_b32 v{T}, 4, v{T}")
        S(f"v_xor_b32 v{T}, v{T}, v{F6}")
        S(f"v_lshl_add_u32 v{r}, v{r}, 8, v{T}")
        S(f"v_lshrrev_b32 v{T}, 2, v{T}")
        S(f"v_add_u32 v{TAB + n}, v{T}, v{TB}")

    def g_read(n):
        S.mem("lg", f"ds_read_b32 v{KK[n & 1]}, v{TAB + n}", ("gr", n))

    def g_chain(n):
        k = KK[n & 1]; m1, m2 = k + 1, k + 2
        tie = 0x03020100 if (n & 1) == 0 else 0x02030001
        L = [f"v_perm_b32 v{k}, v{LUT}, s62, v{k}",
             f"v_perm_b32 v{k}, v{k}, v{k}, v{PSEL}",
             "s_nop 0",
             f"v_add_u32_dpp v{k}, v{k}, v{k} quad_perm:[1,0,3,2] row_mask:0xf bank_mask:0xf",
             "s_nop 0",
             f"v_add_u32_dpp v{k}, v{k}, v{k} quad_perm:[2,3,0,1] row_mask:0xf bank_mask:0xf",
             f"v_add_u32 v{k}, {tie}, v{k}",
             f"v_min_u32_sdwa v{m1}, v{k}, v{k} dst_sel:DWORD dst_unused:UNUSED_PAD src0_sel:BYTE_0 src1_sel:BYTE_1",
             f"v_min_u32_sdwa v{m2}, v{k}, v{k} dst_sel:DWORD dst_unused:UNUSED_PAD src0_sel:BYTE_2 src1_sel:BYTE_3",
             f"v_min_u32 v{m1}, v{m1}, v{m2}",
             f"v_bitop3_b32 v{m1}, v{m1}, 3, v{F + 21 * (n & 1)} bitop3:0x6a"]
        return L

    def g_upd(n):
        k = KK[n & 1]; m1, m2 = k + 1, k + 2
        S(f"v_lshlrev_b32 v{m2}, 3, v{m1}")
        S(f"v_lshlrev_b32 v{m2}, v{m2}, 1")
        S.mem("lg", f"ds_add_u32 v{TAB + n}, v{m2}", "gadd")

    def g_out(n):
        k = KK[n & 1]; m1 = k + 1
        S(f"v_mul_u32_u24 v{m1}, v{m1}, v{C257}")
        mid = 1 if 4 <= n <= 11 else 0
        S(f"v_bitop3_b32 v{m1}, v{m1}, s63, v{OB0 + mid} bitop3:0x6a")
        S.mem("lg", f"ds_write_b16 v{m1}, v{GA+n} offset:{16*n}", "gw")

    def greedy():
        S(f"v_xor_b32 v{F+21}, 1, v{F}")
        for n in range(4):
            ga(n)
            S(f"v_xor_b32 v{KK[n & 1]+1}, {n}, v{F}")
            g_upd(n); g_out(n)
        ga(4); ga(5)
        for n in range(4, 16, 2):
            g_read(n); g_read(n + 1)
            if n >= 6: g_out(n - 2); g_out(n - 1)
            if n + 2 < 16: ga(n + 2); ga(n + 3)
            S.wait("lg", ("gr", n + 1))
            for x, y in zip(g_chain(n), g_chain(n + 1)):
                S(x)
                if not x.startswith("s_nop"): S(y)
            g_upd(n); g_upd(n + 1)
        g_out(14); g_out(15)
        S.wait("lg", "ALL")

    def prep_store():
        S(f"s_lshl_b32 s42, s3, 11\ns_add_u32 s42, s42, {GO}\nv_add_u32 v144, s42, v{ADV}")
        for i in range(2):
            S.mem("lg", f"ds_read_b128 v[{128+4*i}:{131+4*i}], v144 offset:{1024*i}", "go")
        S("s_lshr_b32 s42, s40, 4\ns_lshl_b32 s43, s41, 2\ns_add_u32 s42, s42, s43\ns_mul_i32 s42, s42, 50")
        S("s_lshr_b32 s43, s40, 1\ns_lshl_b32 s44, s41, 1\ns_sub_u32 s43, s43, s44\ns_sub_u32 s43, s43, 2\ns_and_b32 s43, s43, 7")
        S("s_add_u32 s42, s42, s43\ns_lshl_b32 s42, s42, 10")
        S("s_and_b32 s44, s40, 1\ns_lshl_b32 s44, s44, 9\ns_add_u32 s42, s42, s44")
        S("s_lshl_b32 s44, s3, 15\ns_add_u32 s42, s42, s44")
        S(f"v_and_b32 v145, 31, v{VL}\nv_lshlrev_b32 v145, 4, v145")
        S(f"v_lshrrev_b32 v146, 5, v{VL}\nv_lshl_add_u32 v145, v146, 13, v145")
        S("s_cmp_ge_u32 s43, 6\ns_cselect_b32 s44, 32, 0\ns_cmp_eq_u32 s3, 0\ns_cselect_b32 s44, 64, s44\ns_cselect_b32 s43, 0, 6144")
        S(f"v_cmp_gt_u32 vcc, s44, v{VL}\nv_mov_b32 v146, 0x7ffffff0")
        S.wait("lg", "go")
        S("v_cndmask_b32 v146, v146, v145, vcc")
        S.mem("vm", f"buffer_store_dwordx4 v[128:131], v145, {srdt(S_AD)}, s42 offen sc1", "pst")
        S("s_add_u32 s42, s42, 16384\ns_sub_u32 s42, s42, s43")
        S.mem("vm", f"buffer_store_dwordx4 v[132:135], v146, {srdt(S_AD)}, s42 offen sc1", "pst")

    def ws_loads(lab):
        S(f"s_cmp_lt_u32 s40, 28\ns_cselect_b32 s44, s3, 0\ns_cmp_eq_u32 s44, 2\ns_cbranch_scc0 {lab}")
        S("s_mov_b32 s43, 0")
        for J in range(1, 7):
            S(f"s_cmp_ge_u32 s40, {J*(J+1)//2}\ns_cselect_b32 s43, {J}, s43")
        S("s_add_u32 s42, s43, 1\ns_mul_i32 s42, s42, s43\ns_lshr_b32 s42, s42, 1\ns_sub_u32 s42, s40, s42")
        S(f"v_and_b32 v24, 3, v{VL}\nv_mul_u32_u24 v24, 25, v24\nv_bfe_u32 v25, v{VL}, 2, 2\nv_add_u32 v24, v24, v25")
        S(f"v_lshl_add_u32 v24, s43, 2, v24")
        S(f"v_lshrrev_b32 v26, 4, v{VL}\nv_lshl_add_u32 v26, s42, 2, v26")
        S(f"v_lshl_add_u32 v25, s43, 2, v25")
        S("v_max_u32 v25, v25, v26\nv_cmp_gt_u32 vcc, 25, v25")
        S("v_mul_u32_u24 v25, 100, v26\nv_add_lshl_u32 v25, v25, v24, 1")
        S("v_mul_u32_u24 v27, 100, v24\nv_add_lshl_u32 v27, v27, v26, 1")
        S("v_mov_b32 v24, 0x7ff00000\nv_cndmask_b32 v25, v24, v25, vcc\nv_cndmask_b32 v27, v24, v27, vcc")
        S("s_cmp_eq_u32 s42, s43\ns_cselect_b32 s44, 0x100000, 0")
        S.srd(S_T0, P_WP, 20000)
        for r in range(4):
            S(f"s_mov_b32 s43, {5000*r}")
            S.mem("vm", f"buffer_load_ushort v{16+r}, v25, {srdt(S_T0)}, s43 offen", "wsl", opt=True)
            S.mem("vm", f"buffer_load_ushort v{20+r}, v27, {srdt(S_T0)}, s44 offen offset:{50*r}", "wsl", opt=True)
        S(f"{lab}:")

    def ws_store(lab):
        S(f"s_cmp_lt_u32 s40, 28\ns_cselect_b32 s44, s3, 0\ns_cmp_eq_u32 s44, 2\ns_cbranch_scc0 {lab}")
        S.wait("vm", "wsl", local=True)
        for r in range(8): S(f"v_lshlrev_b32 v{16+r}, 16, v{16+r}")
        for r in range(4): S(f"v_add_f32 v{16+r}, v{16+r}, v{20+r}")
        S.srd(S_T0, P_WS, 4 * 32768, WS_WS)
        S("s_lshl_b32 s44, s41, 15\ns_lshl_b32 s43, s40, 10\ns_add_u32 s44, s44, s43")
        S.mem("vm", f"buffer_store_dwordx4 v[16:19], v{ADV}, {srdt(S_T0)}, s44 offen sc1", "wss", opt=True)
        S(f"{lab}:")

    def ws_sig(lab):
        S(f"s_cmp_lg_u32 s3, 2\ns_cbranch_scc1 {lab}")
        S.wait("vm", "wss", local=True)
        S("s_lshl_b32 s42, s41, 6\ns_add_u32 s42, s42, s40\ns_lshl_b32 s42, s42, 4")
        S(f"v_mov_b32 v{D}, s56\nv_lshlrev_b32 v{D+1}, 20, v{VL}")
        S.mem("vm", f"buffer_store_dword v{D}, v{D+1}, {srdt(S_T1)}, s42 offen offset:4 sc1", "sigw", opt=True)
        S(f"{lab}:")

    S(f".globl {NAME}\n.p2align 8\n.type {NAME},@function\n{NAME}:")
    S("s_cmp_ge_u32 s2, 256\ns_cbranch_scc1 L_END")
    stamp(0)
    if OPT["dly"]:
        S(f"s_cmp_lt_u32 s2, 128\ns_cbranch_scc1 L_dl2\ns_mov_b32 s40, {OPT['dly']}\nL_dl1:\ns_sleep 127\ns_sub_u32 s40, s40, 1\ns_cmp_lg_u32 s40, 0\ns_cbranch_scc1 L_dl1\nL_dl2:")
    S("s_load_dwordx16 s[64:79], s[0:1], 0")
    S("s_load_dwordx4 s[80:83], s[0:1], 64")
    S(f"v_lshrrev_b32 v{VW}, 6, v0")
    S(f"v_and_b32 v{VL}, 63, v0")
    if OPT["pfc"]:
        S(f"s_getpc_b64 s[{S_T0}:{S_T0+1}]\nL_PC:\ns_mov_b32 s{S_T0+2}, L_CODE_END-L_PC\ns_mov_b32 s{S_T0+3}, 0x20000")
        S("v_lshrrev_b32 v47, 3, v0\nv_lshlrev_b32 v46, 7, v0\nv_lshl_add_u32 v46, v47, 20, v46\ns_lshr_b32 s44, s2, 3\ns_lshl_b32 s44, s44, 10")
        S(f"buffer_load_dword v47, v46, {srdt(S_T0)}, s44 offen")
    S(f"v_readfirstlane_b32 s3, v{VW}")
    S("s_and_b32 s36, s2, 7\ns_lshl_b32 s36, s36, 3\ns_bfe_u32 s37, s2, 0x30003\ns_add_u32 s36, s36, s37")
    S("s_lshr_b32 s37, s2, 6")
    S("s_lshr_b32 s40, s2, 2\ns_and_b32 s41, s2, 3")
    S(f"v_lshlrev_b32 v{ADV}, 4, v{VL}")
    S("s_lshl_b32 s38, s36, 4\ns_lshl_b32 s39, s3, 17\ns_add_u32 s38, s38, s39")
    S(f"v_lshl_add_u32 v{DMAV}, v{VL}, 10, s38")
    S("s_mul_i32 s45, s37, 24*131072")
    S("s_add_u32 s46, s45, 24*131072")
    S(f"s_mul_i32 s47, s3, 2112\ns_add_u32 s47, s47, {STG}")
    S(f"s_add_u32 s48, s47, {3*STGSZ}")
    S("s_mov_b32 s49, s3")
    S(f"v_and_b32 v44, 15, v{VL}\nv_lshrrev_b32 v45, 4, v{VL}")
    for jj in range(4):
        S(f"v_add_u32 v{40+jj}, {4*jj}, v45\nv_xor_b32 v{40+jj}, v{40+jj}, v44\nv_lshlrev_b32 v{40+jj}, 4, v{40+jj}")
        S(f"v_lshl_add_u32 v{40+jj}, v45, 8, v{40+jj}")
    S("s_lshl_b32 s50, s3, 16")
    S("s_lshl_b32 s51, s3, 14")
    S(f"v_lshlrev_b32 v46, 7, v{VL}")
    S("s_waitcnt lgkmcnt(0)")

    def srds():
        S.srd(S_TAB, P_TAB, 256000)
        S.srd(S_W1, P_W1, 12800 * 1024)
        S.srd(S_DBG, P_DBG, 256)

    def pft():
        S(f"v_mov_b32 v49, 0x7ff00000\nv_cmp_gt_u32 vcc, 32, v{VL}")
        S("s_lshr_b32 s44, s2, 3\ns_lshl_b32 s44, s44, 13\ns_and_b32 s52, s3, 1\ns_lshl_b32 s52, s52, 12\ns_add_u32 s44, s44, s52")
        S("v_cndmask_b32 v48, v49, v46, vcc")
        S.mem("vm", f"buffer_load_dword v47, v48, {srdt(S_TAB)}, s44 offen", "pft")

    def pfw(ph):
        S("s_and_b32 s52, s36, 7\ns_lshl_b32 s52, s52, 16\ns_lshl_b32 s44, s36, 4\ns_add_u32 s52, s52, s44")
        if ph <= 0:
            S(f"v_and_b32 v48, 31, v{VL}\nv_lshlrev_b32 v48, 10, v48\nv_lshrrev_b32 v49, 5, v{VL}\nv_lshl_add_u32 v48, v49, 19, v48")
            S("s_and_b32 s44, s3, 1\ns_lshl_b32 s44, s44, 15\ns_add_u32 s52, s52, s44\ns_add_u32 s52, s52, s45")
            if ph: S(f"s_add_u32 s52, s52, {-ph*4*131072}")
            S.mem("vm", f"buffer_load_dword v47, v48, {srdt(S_W1)}, s52 offen", "pfw")
        else:
            S(f"v_lshlrev_b32 v0, 10, v44\nv_lshl_add_u32 v0, v45, 19, v0\nv_mov_b32 v49, 0x7ff00000\nv_cmp_gt_u32 vcc, 48, v{VL}\ns_nop 1\nv_cndmask_b32 v0, v49, v0, vcc")
            S("s_lshl_b32 s44, s3, 14\ns_add_u32 s52, s52, s44")
            if ph < 6:
                S(f"s_mul_i32 s44, s37, 24*131072\ns_add_u32 s52, s52, s44\ns_add_u32 s52, s52, {ph*4*131072}")
            else:
                S("s_add_u32 s52, s52, 96*131072")
            S.mem("vm", f"buffer_load_dword v{VW}, v0, {srdt(S_W1)}, s52 offen", "pfw")

    def misc_loads():
        S.srd(S_T0, P_WP, 20000)
        S(f"v_mov_b32 v49, 0x7ff00000\nv_cmp_gt_u32 vcc, 3, v{VL}")
        S("s_lshr_b32 s44, s2, 3\ns_lshl_b32 s44, s44, 1\ns_add_u32 s44, s44, s3\ns_mul_i32 s44, s44, 384")
        S("v_cndmask_b32 v48, v49, v46, vcc")
        S.mem("vm", f"buffer_load_dword v47, v48, {srdt(S_T0)}, s44 offen", "pfp")
        S("s_cmp_lt_u32 s2, 8\ns_cselect_b32 s44, s3, 0\ns_cmp_eq_u32 s44, 1\ns_cbranch_scc0 L_nn")
        S("s_memrealtime s[42:43]\ns_waitcnt lgkmcnt(0)\ns_or_b32 s42, s42, 1")
        S(f"v_mov_b32 v48, s42\nv_mov_b32 v49, 0\nv_lshlrev_b32 v50, 20, v{VL}")
        S.mem("vm", f"buffer_atomic_cmpswap v[48:49], v50, {srdt(S_DBG)}, 0 offen sc1", "nn", opt=True)
        S("L_nn:")

    def pfi():
        S(f"v_cmp_gt_u32 vcc, 14, v{VL}\ns_lshl_b32 s44, s2, 2\ns_add_u32 s44, s44, s3\ns_mul_i32 s44, s44, 1600")
        S("v_mov_b32 v49, 0x7ff00000\nv_cndmask_b32 v48, v49, v46, vcc")
        S.mem("vm", f"buffer_load_dword v{VW}, v48, {srdt(S_IDX)}, s44 offen", "pfi")

    def wdma(half, tag, opt=False):
        if half == 0:
            S("s_mov_b32 m0, s47\ns_nop 0")
            S.mem("vm", f"buffer_load_dwordx4 v{DMAV}, {srdt(S_W1)}, s45 offen lds", tag, opt)
        else:
            S("s_add_u32 m0, s47, 1024\ns_add_u32 s44, s45, 65536")
            S.mem("vm", f"buffer_load_dwordx4 v{DMAV}, {srdt(S_W1)}, s44 offen lds", tag, opt)

    def wdma_adv():
        S(f"s_add_u32 s47, s47, {STGSZ}")
        S("s_cmp_eq_u32 s47, s48")
        S(f"s_cselect_b32 s44, {3*STGSZ}, 0\ns_sub_u32 s47, s47, s44")
        S("s_add_u32 s45, s45, 4*131072")
        S("s_cmp_eq_u32 s45, 100*131072\ns_cselect_b32 s49, 0xff, s49")
        S("s_cmp_eq_u32 s45, s46\ns_cselect_b32 s45, 96*131072, s45")

    def wsite(k, tag):
        S.nlab += 1
        lab = f"L_ws{k}_@{S.nlab}"
        S(f"s_cmp_eq_u32 s49, {k & 3}\ns_cbranch_scc0 {lab}")
        wdma(k >> 2, tag, True)
        S(f"{lab}:")

    TSL = [0, 8192, TB1, TB1 + 8192, 8192, TB1, TB1 + 8192, TB1]

    def tdma(nb, j):
        if j % 2 == 0:
            S(f"s_add_u32 m0, s51, {TSL[nb] + (j & ~3) * 1024}")
            S(f"s_add_u32 s52, s50, {(nb * 8 + (j & ~3)) * 1024}")
        S.mem("vm", f"buffer_load_dwordx4 v{40 + (j & 3)}, {srdt(S_TAB)}, s52 offen offset:{(j & 3) * 1024} lds", ("td", nb))

    def consts():
        S.srd(S_AD, P_WS, WS_ADDR_SZ, WS_ADDR)
        S.srd(S_P, P_WS, WS_P_SZ, WS_P)
        S.srd(S_T1, P_WS, 8192, WS_FL)
        S(f"v_and_b32 v13, 31, v{VL}\nv_lshrrev_b32 v14, 2, v13\nv_and_b32 v13, 3, v13")
        S("v_lshlrev_b32 v13, 4, v13\nv_lshl_add_u32 v13, v14, 8, v13")
        S(f"v_lshrrev_b32 v15, 5, v{VL}\nv_lshl_add_u32 v13, v15, 7, v13")
        S(f"v_lshl_add_u32 v13, v{VW}, 14, v13")
        S("v_and_b32 v14, 1, v14")
        S(f"v_lshl_add_u32 v{WA}, v14, 6, v13")
        S(f"v_xor_b32 v{WB}, 64, v{WA}")
        S(f"v_xor_b32 v13, v44, v15\nv_lshlrev_b32 v13, 4, v13\nv_and_b32 v14, 31, v{VL}\nv_lshl_add_u32 v13, v14, 8, v13")
        S(f"v_lshl_add_u32 v32, v{VW}, 14, v13")
        for ks in range(1, 8):
            S(f"v_xor_b32 v{32+ks}, {32*ks}, v32")
        for ks in range(8):
            S(f"v_xor_b32 v{56+ks}, 0x10000, v{32+ks}")
        S(f"v_and_b32 v13, 1, v{VL}\nv_bfe_u32 v14, v{VL}, 4, 1\nv_lshl_add_u32 v13, v13, 1, v14")
        S("v_mul_u32_u24 v13, 2112, v13")
        S(f"v_bfe_u32 v14, v{VL}, 2, 2\nv_lshl_add_u32 v14, v15, 3, v14\nv_lshl_add_u32 v13, v14, 4, v13")
        S(f"v_bfe_u32 v14, v{VL}, 1, 1\nv_lshl_add_u32 v13, v14, 3, v13")
        S(f"v_add_u32 v{TRA}, {STG}, v13")
        S(f"v_mov_b32 v{TRB}, v{TRA}")
        S(f"v_bfe_u32 v13, v{VL}, 4, 1\nv_bfe_u32 v14, v{VL}, 3, 1\nv_cmp_eq_u32 vcc, v13, v14")
        S(f"v_mov_b32 v13, 0x3f80\nv_bfe_u32 v14, v{VL}, 2, 1")
        S("v_cndmask_b32 v13, 0, v13, vcc")
        S("v_cmp_eq_u32 vcc, 0, v14")
        S("s_nop 1")
        S(f"v_cndmask_b32 v{SEL}, 0, v13, vcc")
        S(f"v_xor_b32 v{SEL+1}, v{SEL}, v13")
        S(f"v_mov_b32 v{SEL+2}, v{SEL}\nv_mov_b32 v{SEL+3}, v{SEL+1}")
        S(f"v_and_b32 v13, 3, v{VL}")
        S(f"v_mul_u32_u24 v{IDX}, 0x5555, v13")
        S("s_mov_b32 s53, 0x110000\ns_mov_b32 s54, 0")
        S("s_lshl_b32 s55, s37, 2\ns_add_u32 s55, s55, s3\ns_mul_i32 s55, s55, 51200")
        S("s_mov_b32 s60, s2\ns_mov_b32 s61, 0\nv_mov_b32 v50, 0")

    main_items = S.items
    S.items = []
    S.srd(S_IDX, P_IDX, 4096 * 400)
    prep_loads()
    stamp(4, 2)
    srds()
    misc_loads()
    consts()
    if OPT["early"] == 1: pfw(-2)
    greedy_consts()
    stamp(1); stamp(5, 2)
    greedy()
    prep_store()
    stamp(1, 2)
    S(f"buffer_load_dword v51, v50, {srdt(S_DBG)}, 0 offen sc1")
    for j in range(8): tdma(1, j)
    stamp(2, 2)
    g_code = flat(S.resolve())
    S.items = []
    srds()
    S.srd(S_IDX, P_IDX, 4096 * 400)
    consts()
    pft(); pfw(0)
    S("s_sub_u32 s50, s50, 0x20000\ns_sub_u32 s51, s51, 0x8000\ns_sub_u32 s47, s47, 4224\ns_mov_b32 s39, 2")
    S(f"v_subrev_u32 v{DMAV}, 0x40000, v{DMAV}")
    stamp(3, 2)
    S("L_ld:")
    for j in range(8): tdma(0, j)
    wdma(0, None); wdma(1, None)
    S("s_add_u32 s50, s50, 0x20000\ns_add_u32 s51, s51, 0x8000\ns_add_u32 s47, s47, 4224")
    S(f"v_add_u32 v{DMAV}, 0x40000, v{DMAV}")
    S("s_sub_u32 s39, s39, 1\ns_cmp_lg_u32 s39, 0\ns_cbranch_scc1 L_ld")
    S("s_sub_u32 s50, s50, 0x20000\ns_sub_u32 s51, s51, 0x8000\ns_sub_u32 s47, s47, 4224")
    S(f"v_subrev_u32 v{DMAV}, 0x40000, v{DMAV}")
    stamp(1); stamp(4, 2)
    if OPT["early"] == 2: pfw(-2)
    S(f"buffer_load_dword v51, v50, {srdt(S_DBG)}, 0 offen sc1")
    for j in range(8): tdma(1, j)
    stamp(1, 2)
    S(f"s_waitcnt vmcnt({10 if OPT['early'] == 2 else 9})")
    stamp(2, 2)
    l_code = flat(S.resolve())
    S.items = main_items
    S("s_cmp_ge_u32 s3, 2\ns_cbranch_scc1 L_loader")
    for x in g_code: S(x)
    S("s_branch L_join\nL_loader:")
    for x in l_code: S(x)
    S("L_join:")
    S.mem("vm", "", "nld")
    for j in range(8): S.mem("vm", "", ("td", 1))
    wdma_adv()
    S("s_barrier")
    stamp(2)

    def adload(c):
        r = AD + (c & 3) * 4
        S.mem("vm", f"buffer_load_dwordx4 v[{r}:{r+3}], v{ADV}, {srdt(S_AD)}, s55 offen offset:{(c & 3) * 1024} sc1", ("ad", c))
        if (c & 3) == 3:
            S("s_add_u32 s55, s55, 4096")

    def trread(ks, half, tag):
        r = AF + ks * 4 + half * 2
        S.mem("lg", f"ds_read_b64_tr_b16 v[{r}:{r+1}], v{TRA} offset:{ks*256 + half*64}", tag)

    def tr_advance():
        S(f"s_add_u32 s54, s54, {STGSZ}")
        S(f"s_cmp_eq_u32 s54, {3*STGSZ}")
        S("s_cselect_b32 s54, 0, s54")
        S(f"v_add_u32 v{TRA}, s54, v{TRB}")

    def tread(nb, ks):
        if ks == 0 and nb >= 1:
            S.wait("vm", ("td", nb))
        k = nb * 8 + ks
        S.mem("lg", f"ds_read_b128 a[{4*k}:{4*k+3}], v{(56 if TSL[nb] >= TB1 else 32)+ks} offset:{TSL[nb] & 0xffff}", ("tr", nb, ks))

    for ks in range(8):
        for h in range(2): trread(ks, h, ("af", 0, ks))
        tread(0, ks)
    tr_advance()

    OFF = 38
    G0 = -6
    NT = 6 * 32 + 8

    def C(tile, i):
        d = D + (tile & 1) * 16 + (i >> 2) * 8
        i &= 3
        S(f"v_cvt_pk_bf16_f32 v{d+i}, v{d+2*i}, v{d+2*i+1}")

    def W(tile, h, tag):
        d = D + (tile & 1) * 16 + h * 8
        S.mem("lg", f"ds_write_b128 v{WB if h else WA}, v[{d}:{d+3}] offset:{(tile & 7)*2048}", tag)

    def U(gt):
        if not (G0 + 4 <= gt < NT): return
        c = gt >> 2
        if gt % 32 == 0:
            S("s_xor_b32 s53, s53, 0x10000\ns_and_b32 s53, s53, 0x10000")
        if (gt & 3) == 0:
            S.wait("vm", ("ad", c))
        a = AD + (c & 3) * 4 + (gt & 3)
        S(f"v_add_u32_sdwa v{UA}, v{a}, s53 dst_sel:DWORD dst_unused:UNUSED_PAD src0_sel:WORD_0 src1_sel:DWORD")
        S(f"v_add_u32_sdwa v{UA+1}, v{a}, s53 dst_sel:DWORD dst_unused:UNUSED_PAD src0_sel:WORD_1 src1_sel:DWORD")

    def R(gt):
        if not (G0 + 3 <= gt < NT): return
        g = G + (gt & 3) * 8
        S.mem("lg", f"ds_read_b128 v[{g}:{g+3}], v{UA}", ("g", gt))
        S.mem("lg", f"ds_read_b128 v[{g+4}:{g+7}], v{UA+1}", ("g", gt))

    def SM(gt):
        if not (G0 <= gt < NT): return
        S.wait("lg", ("g", gt))
        g = G + (gt & 3) * 8
        a = ACC + ((gt & 31) + (24 if gt >= 192 else 0)) * 4
        S(f"v_smfmac_f32_16x16x64_bf16 v[{a}:{a+3}], v[{SEL}:{SEL+3}], v[{g}:{g+7}], v{IDX}")

    def M(p, nb, ks):
        if p is None: return
        if p == 0:
            S.wait("lg", ("tr", nb, ks))
        if nb == 0:
            S.wait("lg", ("af", p, ks))
        d = D + (nb & 1) * 16
        k = nb * 8 + ks
        c = "0" if ks == 0 else f"v[{d}:{d+15}]"
        S(f"v_mfma_f32_32x32x16_bf16 v[{d}:{d+15}], v[{AF+4*ks}:{AF+4*ks+3}], a[{4*k}:{4*k+3}], {c}")

    def pk(tq, i):
        a = ACC + tq * 16
        S(f"v_cvt_pk_bf16_f32 v{a+i}, v{a+2*i}, v{a+2*i+1}")

    LP, FA, FB, F6R = ACC, ACC + 4, ACC + 8, ACC + 12
    DT = [ACC + 16, ACC + 20, ACC + 24, ACC + 28]
    IXR = ACC + 32
    IXV, STV = TRB, DMAV
    TMP = ACC + 88

    def wsreg(k):
        return 64 + 4 * k if k < 16 else 16 + 4 * (k - 16)

    def pnn_consts(part):
        t0, t1, t2 = DT[0], DT[0] + 1, DT[0] + 2
        if part == 0:
            S(f"v_and_b32 v{t0}, 15, v{VL}\nv_lshrrev_b32 v{t1}, 4, v{VL}\nv_and_b32 v{t2}, 3, v{VL}")
            S(f"s_add_u32 s57, s51, {TB1}\ns_mul_i32 s58, s3, 9216")
        elif part <= 4:
            jj = part - 1
            r = LP + jj
            S(f"v_add_u32 v{r}, {4*jj}, v{t1}\nv_xor_b32 v{r}, v{r}, v{t0}\nv_lshlrev_b32 v{r}, 4, v{r}")
            S(f"v_add_u32 v{r}, {3072 - 1024*jj}, v{r}")
        elif part <= 12:
            ks, hf = (part - 5) >> 1, (part - 5) & 1
            a, b, c = FA + ks, FB + ks, F6R + ks
            if hf == 0:
                S(f"v_add_u32 v{a}, {4*ks}, v{t1}")
                S(f"v_xor_b32 v{c}, v{a}, v{t2}\nv_xor_b32 v{a}, v{a}, v{t0}")
                S(f"v_lshlrev_b32 v{a}, 4, v{a}\nv_lshlrev_b32 v{c}, 4, v{c}")
            else:
                S(f"v_lshl_add_u32 v{a}, v{t0}, 8, v{a}\nv_lshl_add_u32 v{c}, v{t2}, 8, v{c}")
                S(f"v_add_u32 v{b}, s58, v{a}\nv_add_u32 v{c}, s58, v{c}\nv_add_u32 v{a}, s57, v{a}")
        else:
            S(f"v_cmp_gt_u32 vcc, 4, v{t0}\nv_mov_b32 v{t2}, 0x100000")
            S(f"s_sub_u32 s{S_TAB}, s{P_TAB}, 3072\ns_subb_u32 s{S_TAB+1}, s{P_TAB+1}, 0")
            S(f"s_mov_b32 s{S_TAB+2}, {256000 + 3072}\ns_mov_b32 s{S_TAB+3}, 0x20000")
            for ks in range(4):
                S(f"v_cndmask_b32 v{F6R+ks}, v{t2}, v{F6R+ks}, vcc")

    def ixreg(bi, I):
        return IXR + 4 * ((bi * 7 + I) % 14)

    def ixload(bi, I):
        r = ixreg(bi, I)
        if I < 6:
            S.mem("vm", f"buffer_load_dwordx4 v[{r}:{r+3}], v{IXV}, {srdt(S_IDX)}, s59 offen offset:{400*bi + 16*I}", ("ix", bi, I))
        else:
            S.mem("vm", f"buffer_load_dword v{r}, v{IXV}, {srdt(S_IDX)}, s59 offen offset:{400*bi + 96}", ("ix", bi, I))

    def pdma(bi, I, jj):
        r = ixreg(bi, I) + jj
        if jj == 0:
            if bi > 0: S.wait("lg", ("er", bi - 1, I))
            S.wait("vm", ("ix", bi, I))
            S(f"s_add_u32 m0, s57, {I*4096}" if I < 4 else f"s_add_u32 m0, s58, {(I-4)*4096}")
        S(f"v_lshl_add_u32 v{r}, v{r}, 8, v{LP+jj}")
        S.mem("vm", f"buffer_load_dwordx4 v{r}, {srdt(S_TAB)}, 0 offen offset:{jj*1024} lds", ("pd", bi, I))

    def pdma_rb(bi, I):
        for jj in range(4 if I < 6 else 1): pdma(bi, I, jj)

    def store_setup():
        S(f"v_and_b32 v{STV}, 15, v{VL}\nv_lshlrev_b32 v{STV}, 4, v{STV}")
        S(f"v_bfe_u32 v0, v{VL}, 4, 1\nv_lshl_add_u32 v{STV}, v0, 15, v{STV}")
        S(f"v_lshrrev_b32 v0, 5, v{VL}\nv_lshl_add_u32 v{STV}, v0, 9, v{STV}")
        S("s_lshl_b32 s45, s37, 22\ns_lshl_b32 s46, s36, 16\ns_add_u32 s45, s45, s46")
        S("s_lshl_b32 s46, s3, 13\ns_add_u32 s45, s45, s46")
        S("s_lshl_b32 s46, s37, 1\ns_add_u32 s46, s46, 2")

    def pstore(tq, h):
        if h == 0:
            S(f"s_add_u32 s47, s46, {tq}\ns_and_b32 s47, s47, 7\ns_lshl_b32 s47, s47, 10\ns_add_u32 s47, s47, s45")
        a = ACC + 16 * tq + 4 * h
        S.mem("vm", f"buffer_store_dwordx4 v[{a}:{a+3}], v{STV}, {srdt(S_P)}, s47 offen offset:{256*h} sc1", "pstore")

    def ereg(bi, I, ks):
        return (bi & 1) * 112 + (I * 4 + ks) * 4

    def eread(bi, I, ks):
        if ks == 0:
            S.wait("vm", ("pd", bi, I))
        a = ereg(bi, I, ks)
        if I < 4: adr, off = FA + ks, I * 4096
        elif I < 6: adr, off = FB + ks, (I - 4) * 4096
        else: adr, off = F6R + ks, 8192
        S.mem("lg", f"ds_read_b128 a[{a}:{a+3}], v{adr} offset:{off}", ("er", bi, I))

    def wsdma(i):
        if i == 0:
            S.srd(S_T0, P_WS, 4 * 32768, WS_WS)
            S(f"s_lshl_b32 s48, s37, 15\ns_mul_i32 s44, s3, 7168\ns_add_u32 s48, s48, s44\ns_add_u32 s49, s44, {STG}")
        if i % 4 == 0:
            S(f"s_add_u32 m0, s49, {i*1024}\ns_add_u32 s50, s48, {i*1024}")
        S.mem("vm", f"buffer_load_dwordx4 v{ADV}, {srdt(S_T0)}, s50 offen offset:{(i & 3)*1024} sc1 lds", "wsd")

    def wsread(k):
        r = wsreg(k)
        S.mem("lg", f"ds_read_b128 v[{r}:{r+3}], v{TRA} offset:{1024*k}", ("ws", k))

    J = {}

    def job(pi, gap, f):
        J.setdefault((pi, gap), []).append(f)

    def gjob(seg, g, f):
        job(seg * 32 + g // 2, g & 1, f)

    PREV = {4: 1, 5: 2, 6: 3, 7: 5}

    def tdj(nb, j):
        if j == 0 and nb >= 4: S.wait("lg", ("tr", PREV[nb], 7))
        tdma(nb, j)
    plan = {1: (None, 4), 2: (0, 10), 3: (2, 14), 4: (7, 20), 5: (13, 26), 6: (17, 34), 7: (29, 44)}
    for nb, (gd, gr) in plan.items():
        if gd is not None:
            for n in range(8): gjob(0, gd + n // 4, lambda nb=nb, n=n: tdj(nb, n))
        for n in range(8): gjob(0, gr + n // 4, lambda nb=nb, n=n: tread(nb, n))
    for k in range(8): gjob(0, [20, 22, 24, 26, 32, 34, 36, 38][k], lambda k=k: wsite(k, ("dma", 1)))
    gjob(0, 45, wdma_adv)
    job(19, 1, lambda: ws_loads("L_wsl"))
    job(24, 2, lambda: ws_store("L_wss"))
    job(31, 2, lambda: ws_sig("L_wsg"))

    def pfl_setup():
        S("s_and_b32 s39, s36, 7\ns_lshl_b32 s39, s39, 16\ns_lshl_b32 s44, s36, 4\ns_add_u32 s39, s39, s44\ns_lshl_b32 s44, s3, 14\ns_add_u32 s39, s39, s44")
        S(f"v_and_b32 v0, 0x30, v{VL}\nv_lshlrev_b32 v0, 24, v0\nv_lshl_add_u32 v0, v{VL}, 10, v0\nv_add_u32 v0, s39, v0")
        S(f"s_mul_i32 s39, s37, 24*131072\ns_add_u32 s39, s39, {(16 if OPT['early'] else 8)*131072}")

    def pfl():
        S.mem("vm", f"buffer_load_dword v{VW}, v0, {srdt(S_W1)}, s39 offen", "pfl")
        S("s_add_u32 s39, s39, 4*131072\ns_cmp_eq_u32 s39, s46\ns_cselect_b32 s39, 96*131072, s39")
    job(OPT["pfw"], 1, pfl_setup)
    npf = (1 if OPT["bc"] else 2) if not OPT["early"] else 0
    job(28, 1, lambda: ([pfl() for _ in range(npf)], pfi()))
    for seg in range(1, 6): job(seg * 32 + OPT["pfl"], 1, pfl)

    def nonce():
        S.wait("vm", "nld")
        S("v_readfirstlane_b32 s56, v51")
        S("s_cmp_eq_u32 s56, 0\ns_cbranch_scc1 L_fb_non")
        S("L_nond:")
        COLD.append(f"""L_fb_non:
s_memrealtime s[42:43]
s_waitcnt lgkmcnt(0)
s_or_b32 s42, s42, 1
v_mov_b32 v48, s42
v_mov_b32 v49, 0
v_lshlrev_b32 v51, 20, v{VL}
buffer_atomic_cmpswap v[48:49], v51, {srdt(S_DBG)}, 0 offen sc0 sc1
s_waitcnt vmcnt(0)
v_readfirstlane_b32 s56, v48
s_nop 3
s_cmp_eq_u32 s56, 0
s_cselect_b32 s56, s42, s56
s_branch L_nond""")
    job(OPT["sg1"], 2, nonce)

    def sig1():
        S("s_cmp_ge_u32 s3, 2\ns_cbranch_scc1 L_sig1")
        S("s_lshl_b32 s42, s41, 6\ns_add_u32 s42, s42, s40\ns_lshl_b32 s42, s42, 4\ns_lshl_b32 s43, s3, 3\ns_add_u32 s42, s42, s43")
        S(f"v_mov_b32 v48, s56\nv_lshlrev_b32 v49, 20, v{VL}")
        S.mem("vm", f"buffer_store_dword v48, v49, {srdt(S_T1)}, s42 offen sc1", "sig1", opt=True)
        S("L_sig1:")
    job(OPT["sg1"], 2, sig1)
    for n in range(32):
        r = ACC + 4 * (31 - n)
        job(8 + n // 2, n & 1, lambda r=r: S(f"v_mov_b64 v[{r}:{r+1}], 0\nv_mov_b64 v[{r+2}:{r+3}], 0"))

    def ginit():
        for r in range(G, G + 32, 2): S(f"v_mov_b64 v[{r}:{r+1}], 0")
        S(f"v_mov_b32 v{UA}, 0x100000\nv_mov_b32 v{UA+1}, 0x100000")
        for t in range(G0, G0 + 3): S.mem("lg", "", ("g", t))
    job(30, 1, ginit)

    def poll1_issue():
        S("s_cmp_lg_u32 s3, 1\ns_cbranch_scc1 L_p1i\ns_lshl_b32 s43, s37, 10")
        S.mem("vm", f"buffer_load_dwordx3 v[52:54], v{ADV}, {srdt(S_T1)}, s43 offen sc1", "p1", opt=True)
        S("L_p1i:")
    job(23, 1, poll1_issue)

    def bar1():
        S("s_cmp_lg_u32 s3, 1\ns_cbranch_scc1 L_poll1d")
        S(f"s_mov_b32 s42, {OPT['spin1']}\ns_lshl_b32 s43, s37, 10")
        S("L_poll1:")
        S("s_waitcnt vmcnt(0)")
        S("v_xor_b32 v52, s56, v52\nv_xor_b32 v54, s56, v54\nv_or_b32 v52, v52, v54\nv_cmp_eq_u32 vcc, 0, v52")
        S("s_nop 1\ns_cmp_eq_u64 vcc, -1\ns_cbranch_scc1 L_poll1d")
        S(f"s_sleep 4\nbuffer_load_dwordx3 v[52:54], v{ADV}, {srdt(S_T1)}, s43 offen sc1")
        S("s_sub_u32 s42, s42, 1\ns_cmp_lg_u32 s42, 0\ns_cbranch_scc1 L_poll1")
        S("s_branch L_fb1")
        S("L_poll1d:")

        def fb1():
            st, OPT["stamp"] = OPT["stamp"], 0
            S("L_fb1:\ns_waitcnt vmcnt(0) lgkmcnt(0)\ns_mov_b32 s41, s37\ns_mov_b32 s40, 0")
            S("L_fb1a:\ns_mov_b32 s3, 0")
            S("L_fb1b:")
            prep_loads(); greedy_consts(); greedy(); prep_store()
            S("s_waitcnt vmcnt(0) lgkmcnt(0)\ns_add_u32 s3, s3, 1\ns_cmp_lt_u32 s3, 2\ns_cbranch_scc1 L_fb1b")
            ws_loads("L_fb1c"); ws_store("L_fb1d")
            S("s_waitcnt vmcnt(0)\ns_add_u32 s40, s40, 1\ns_cmp_lt_u32 s40, 64\ns_cbranch_scc1 L_fb1a")
            S("s_mov_b32 s3, 1\ns_lshl_b32 s43, s37, 10")
            S("v_mov_b32 v52, s56\nv_mov_b32 v53, s56\nv_mov_b32 v54, s56")
            S(f"buffer_store_dwordx3 v[52:54], v{ADV}, {srdt(S_T1)}, s43 offen sc1")
            for r in range(ACC, ACC + 64, 2): S(f"v_mov_b64 v[{r}:{r+1}], 0")
            S("s_waitcnt vmcnt(0)\ns_branch L_poll1d")
            OPT["stamp"] = st
        COLD.append("\n".join(sub(fb1)))
        S.wait("vm", ("dma", 1))
        S("s_barrier")
        for c in range(3): adload(c)
        if OPT["pfa"]:
            S("s_and_b32 s42, s36, 7\ns_mul_i32 s42, s42, 5888\ns_add_u32 s42, s42, s55\ns_add_u32 s42, s42, 4096")
            S(f"v_lshlrev_b32 v50, 7, v{VL}\nv_mov_b32 v51, 0x7ff00000\nv_cmp_gt_u32 vcc, 46, v{VL}")
            S("s_nop 1\nv_cndmask_b32 v50, v51, v50, vcc")
            S.mem("vm", f"buffer_load_dword v{VW}, v50, {srdt(S_AD)}, s42 offen sc1", "pfa")
    job(27, 2, bar1)
    if OPT["bc"]:
        for p in range(1, 6):
            for k in range(8): job(p * 32 + [4, 6, 8, 10, 12, 14, 16, 18][k] + OPT["wo"], 1, lambda k=k, p=p: wsite(k, ("dma", p + 1)))
            job(p * 32 + 19 + OPT["wo"], 1, wdma_adv)

            def barc(p=p):
                S.wait("vm", ("dma", p + 1))
                S("s_barrier")
            job(p * 32 + 26, 2, barc)
    else:
        for k in range(8): job([23, 28, 24, 25, 26, 29, 30, 31][k] if OPT["early"] else 28 + k // 2, 0 if OPT["early"] else 2 + (k & 1), lambda k=k: wsite(k, ("dma", 2)))
        job(31, 3, wdma_adv)
        for p in range(1, 6):
            for k in range(8): job(p * 32 + 2 + 4 * k, 1, lambda k=k, p=p: wsite(k, ("dma", p + 2)))
            job(p * 32 + 31, 1, wdma_adv)
    B7 = 6 * 32
    def pollw0():
        S("s_lshl_b32 s43, s37, 10")
        S.mem("vm", f"buffer_load_dword v0, v{ADV}, {srdt(S_T1)}, s43 offen offset:4 sc1", "pw")

    def pollw():
        S.wait("vm", "pw")
        S(f"s_mov_b32 s42, {OPT['spinw']}")
        S("L_pollw:")
        S("v_cmp_eq_u32 vcc, s56, v0")
        S("s_nop 1\ns_cmp_eq_u64 vcc, -1\ns_cbranch_scc1 L_pollwd")
        S(f"s_sleep 4\nbuffer_load_dword v0, v{ADV}, {srdt(S_T1)}, s43 offen offset:4 sc1")
        S("s_waitcnt vmcnt(0)\ns_sub_u32 s42, s42, 1\ns_cmp_lg_u32 s42, 0\ns_cbranch_scc1 L_pollw")
        S("L_pollwd:")
    job(B7 + 0, 1, pollw0)
    job(B7 + 6, 0, pollw)
    job(B7 + 6, 1, store_setup)
    for i in range(7): job(B7 + 7 + i, 1, lambda i=i: wsdma(i)) if i < 3 else job(B7 + 10, 1, lambda i=i: wsdma(i)) if i == 3 else job(B7 + 7 + i, 1, lambda i=i: wsdma(i))
    for tq in range(6):
        base = B7 + 4 * tq + 10
        slots = [(base, 1), (base, 1), (base, 1), (base, 2), (base + 1, 0), (base + 1, 2), (base + 2, 1), (base + 2, 1)]
        for i in range(8): job(*slots[i], lambda tq=tq, i=i: pk(tq, i))
        job(base + 2, 1, lambda tq=tq: pstore(tq, 0))
        job(base + 4, 1, lambda tq=tq: pstore(tq, 1))
    for part in range(14):
        job(B7 + 19 + part, 2 if part % 2 else 0, lambda part=part: pnn_consts(part))

    def ixsetup():
        S(f"v_lshrrev_b32 v{IXV}, 4, v{VL}\nv_mul_u32_u24 v{IXV}, 100, v{IXV}")
        S("s_lshl_b32 s59, s60, 4\ns_lshl_b32 s44, s3, 2\ns_add_u32 s59, s59, s44\ns_mul_i32 s59, s59, 400")
        S(f"v_add_u32 v{TRA}, {STG}, v{ADV}")
    job(B7 + 8, 2, ixsetup)
    for I in range(4): job(B7 + 23 + I, 1, lambda I=I: ixload(0, I))
    for I in range(4, 8): job(B7 + 23 + I, 1, lambda I=I: ixload(I // 7, I % 7))
    B8 = 7 * 32
    for I in range(1, 5): job(B8 + 0, 1, lambda I=I: ixload(1, I))
    for I in range(5, 7): job(B8 + 4, 1, lambda I=I: ixload(1, I))
    for k in range(16): job(B8 + 3 + k // 4, 0, lambda k=k: wsread(15 - k))
    for I in range(4): job(B8 + 5 + I, 3, lambda I=I: pdma_rb(0, I))

    last_pair = NT - 1 + OFF
    GO_P = {0: 0, 1: 1, 2: 2, 3: 3, 4: 4, 5: 5, 6: 6, 7: None}
    for pi in range(0, last_pair + 1):
        seg, gi = pi >> 5, pi & 31
        nb, j = gi >> 2, gi & 3
        p = GO_P[seg]
        if gi == 0:
            S.mark(("seg", seg))
            if seg == 6: stamp(1, 5); stamp(3)
            if seg == 7: stamp(2, 5); stamp(4)
        if seg == 0 and gi in (0, 4, 12, 20, 28): stamp({0: 1, 4: 2, 12: 3, 20: 4, 28: 5}[gi], 3)
        if seg == 7 and gi in (3, 6, 9): stamp({3: 3, 6: 4, 9: 5}[gi], 5)
        if p is not None: Tl = p * 8 + nb - 1
        else: Tl = 55 if (seg == 7 and nb == 0) else -1
        cv = 0 <= Tl < 56
        if nb == 0:
            sch = {0: (["C0"], ["C1", "C2", "C3", "C4"], ["C5"]), 1: (["C6"], ["W0"], ["C7"]), 2: ([], ["W1"], []), 3: ([], [], [])}
        elif nb == 1:
            sch = {0: (["C0"], ["C1", "C2", "C3"], ["C4"]), 1: (["C5"], ["C6", "C7"], []), 2: ([], ["W0"], []), 3: ([], ["W1"], [])}
        else:
            sch = {0: (["C0"], ["C1", "C2", "C3"], ["C4"]), 1: (["C5"], ["W0"], ["C6"]), 2: (["C7"], [], []), 3: ([], ["W1"], [])}
        ga_, gb_, gs_ = sch[j]
        if seg == 0 and j == 0:
            ga_, gb_ = [], ga_ + gb_

        def do(ops):
            if not cv: return
            for o in ops:
                if o[0] == "C": C(Tl, int(o[1]))
                else: W(Tl, int(o[1]), ("w", Tl))

        def jobs(gap):
            for f in J.pop((pi, gap), []): f()

        tr = nb == 7 and p is not None and p < 6
        if seg == 7 and gi == 0: S("s_nop 7")
        M(p, nb, 2 * j)
        R(pi + 3 - OFF)
        if tr: trread(2 * j, 0, ("af", p + 1, 2 * j)); trread(2 * j, 1, ("af", p + 1, 2 * j))
        U(pi + 4 - OFF)
        do(ga_)
        jobs(0)
        M(p, nb, 2 * j + 1)
        do([o for o in gb_ if o[0] == "W"])
        if tr: trread(2 * j + 1, 0, ("af", p + 1, 2 * j + 1)); trread(2 * j + 1, 1, ("af", p + 1, 2 * j + 1))
        gt = pi + 4 - OFF
        if -1 <= gt < NT - 16 and (gt & 3) == 3:
            adload((gt >> 2) + 4)
        jobs(1)
        do([o for o in gb_ if o[0] != "W"])
        SM(pi - OFF)
        do(gs_)
        if tr and j == 3: tr_advance()
        jobs(2)
        if seg >= 1 and gi == 2:
            S.wait("lg", ("w", Tl))
            if seg == 7: S.wait("vm", "wsd")
            S("s_barrier")
        if seg >= 1 and gi == 5:
            if p is not None and p < 6 and not OPT["bc"]:
                S.wait("vm", ("dma", p + 1))
            S("s_barrier")
            if p is not None:
                S(f"v_xor_b32 v{WA}, 0x10000, v{WA}\nv_xor_b32 v{WB}, 0x10000, v{WB}")
        jobs(3)
    assert not J, J.keys()
    S.mark(("seg", 8))
    S("s_barrier")
    S("L_RERUN:")
    stamp(6)
    for I in range(4, 7): pdma_rb(0, I)
    S.srd(S_W1, P_WS, 4096, WS_FL + 4096)
    for ks in range(4): eread(0, 0, ks)
    for ks in range(4): eread(0, 1, ks)

    ACr = [1, 2, 13, 14]
    PJ = {k: [] for k in range(112)}
    cap = {}

    def place(t, kind, f, lim=2):
        while cap.get((t, kind), 0) >= lim: t += 1
        cap[(t, kind)] = cap.get((t, kind), 0) + 1
        PJ[t].append(f)
        return t
    col0 = lambda Jc: Jc * (Jc + 1) // 2
    LAT = OPT["lat"]
    t_pd = {(0, I): (-LAT if I < 4 else -1) for I in range(7)}
    t_er = {(0, 0): -1, (0, 1): -1}
    last = {"er": 0, "pd": 0}
    order = [(b, I) for b in range(4) for I in range(7)]
    for (b, I) in order:
        if (b, I) not in t_pd:
            t = max(t_er[(b - 1, I)] + 2, last["pd"])
            for jj in range(4 if I < 6 else 1):
                t = place(t, "pd", lambda b=b, I=I, jj=jj: pdma(b, I, jj), lim=2 if b == 1 else 1)
            last["pd"] = t
            t_pd[(b, I)] = t
        if (b, I) not in t_er:
            t = max(t_pd[(b, I)] + LAT, last["er"], 28 * (b - 1), 0)
            dl = 28 * b + col0(I) - 3
            t = min(t, max(dl, last["er"], 0))
            for ks in range(4):
                t = place(t, "er", lambda b=b, I=I, ks=ks: eread(b, I, ks), lim=2)
            last["er"] = t
            t_er[(b, I)] = t
            assert t < 28 * b + col0(I) or (b, I) in ((0, 2),), (b, I, t)
    for (b, I) in order:
        if b >= 2:
            t = max(t_pd[(b - 2, I)] + 1, 0)
            place(t, "ix", lambda b=b, I=I: ixload(b, I), lim=1)
    for k in range(16, 28): place((k - 16) // 2, "ws", lambda k=k: wsread(k))
    for i in range(16): place(i // 2 + 1, "pk", lambda i=i: pk(6 + i // 8, i % 8))
    place(6, "st", lambda: pstore(6, 0)); place(8, "st", lambda: pstore(6, 1))
    place(10, "st", lambda: pstore(7, 0)); place(12, "st", lambda: pstore(7, 1))

    def sig2():
        S.wait("vm", "pstore")
        S("s_barrier")
        S("s_or_b32 s44, s3, s61\ns_cmp_lg_u32 s44, 0\ns_cbranch_scc1 L_sig2")
        S(f"s_lshl_b32 s44, s2, 4\nv_mov_b32 v{TMP}, s56\nv_lshlrev_b32 v{TMP+1}, 20, v{VL}")
        S.mem("vm", f"buffer_store_dword v{TMP}, v{TMP+1}, {srdt(S_W1)}, s44 offen sc1", "sig2", opt=True)
        S("L_sig2:")
    PJ[OPT["sg2"]].append(sig2)
    FV = TMP + 2
    B1R, W2R = ACC + 96, ACC + 112

    def final_setup():
        S(f"v_and_b32 v{FV}, 7, v{VL}\nv_lshlrev_b32 v{FV}, 4, v{FV}")
        S(f"v_bfe_u32 v{FV+1}, v{VL}, 4, 1\nv_lshl_add_u32 v{FV}, v{FV+1}, 22, v{FV}")
        S(f"v_bfe_u32 v{FV+1}, v{VL}, 3, 1\nv_lshrrev_b32 v{TMP}, 5, v{VL}\nv_lshl_add_u32 v{FV+1}, v{TMP}, 1, v{FV+1}")
        S(f"v_lshl_add_u32 v{FV}, v{FV+1}, 18, v{FV}")
        S(f"s_lshl_b32 s44, s3, 8\nv_lshl_add_u32 v{FV+1}, v{FV+1}, 6, s44")
        S.srd(S_T0, P_B1, 1024)
        S.srd(S_T1, P_W2, 1024)

    def final_setup2():
        for i in range(4):
            S.mem("vm", f"buffer_load_dwordx4 v[{B1R+4*i}:{B1R+4*i+3}], v{FV+1}, {srdt(S_T0)}, 0 offen offset:{16*i}", "b1")
            S.mem("vm", f"buffer_load_dwordx4 v[{W2R+4*i}:{W2R+4*i+3}], v{FV+1}, {srdt(S_T1)}, 0 offen offset:{16*i}", "b1")
        S.srd(S_T0, P_B2, 2)
        S.srd(S_T1, P_OUT, 8192)
        S(f"v_mov_b32 v{TMP}, 0")
        S.mem("vm", f"buffer_load_ushort v{TMP+1}, v{TMP}, {srdt(S_T0)}, 0 offen", "b1")
    PJ[70].append(final_setup); PJ[72].append(final_setup2)

    PF = TMP + 4
    ABR = IXR
    ABL = FR + 512

    def p2loads(opt):
        for i in range(4):
            S.mem("vm", f"buffer_load_dword v{PF+i}, v{ADV}, {srdt(S_W1)}, 0 offen offset:{1024*i} sc1", "p2", opt=opt)
        S.mem("vm", f"buffer_load_dword v{ABR}, v{ABR+1}, {srdt(S_DBG)}, 0 offen offset:32 sc1", "p2", opt=opt)

    def poll2_issue():
        S("s_cmp_lg_u32 s3, 1\ns_cbranch_scc1 L_p2i")
        S(f"v_lshlrev_b32 v{ABR+1}, 2, v{VL}")
        p2loads(True)
        S("L_p2i:")

    def p2check(lab):
        S("s_waitcnt vmcnt(0)")
        for i in range(4): S(f"v_xor_b32 v{PF+i}, s56, v{PF+i}")
        S(f"v_or3_b32 v{PF}, v{PF}, v{PF+1}, v{PF+2}\nv_or_b32 v{PF}, v{PF}, v{PF+3}")
        S(f"v_cmp_eq_u32 vcc, 0, v{PF}")
        S(f"s_nop 1\ns_cmp_eq_u64 vcc, -1\ns_cbranch_scc1 {lab}")

    def poll2():
        S("s_cmp_lg_u32 s3, 1\ns_cbranch_scc1 L_poll2d")
        S(f"s_mov_b32 s42, {OPT['spin2']}\ns_mov_b32 s43, 0")
        S("L_poll2:")
        p2check("L_poll2k")
        S("s_sleep 4")
        p2loads(True)
        S("s_sub_u32 s42, s42, 1\ns_cmp_lg_u32 s42, 0\ns_cbranch_scc1 L_poll2")
        S("s_branch L_fb2")
        S("L_poll2k:")
        S(f"v_writelane_b32 v{ABR}, s43, 8\nv_add_u32 v{ABR+1}, {ABL}, v{ABR+1}")
        S.mem("lg", f"ds_write_b32 v{ABR+1}, v{ABR}", "abw", opt=True)
        S("L_poll2d:")
        S("s_barrier")
        S("s_lshl_b32 s43, s3, 20\ns_lshl_b32 s44, s60, 7\ns_add_u32 s43, s43, s44")
        S(f"s_mov_b32 s{S_P+2}, {WS_P_SZ}")

        def fb2():
            S("L_fb2:\ns_waitcnt vmcnt(0)")
            S("s_and_b32 s42, s2, 31\ns_lshl_b32 s42, 1, s42\ns_lshr_b32 s44, s2, 5\ns_lshl_b32 s44, s44, 2")
            S(f"v_mov_b32 v{PF}, s42\nv_lshlrev_b32 v{PF+1}, 20, v{VL}")
            S(f"buffer_atomic_or v{PF}, v{PF+1}, {srdt(S_DBG)}, s44 offen offset:32 sc0 sc1")
            S("s_waitcnt vmcnt(0)")
            p2loads(False)
            p2check("L_poll2k")
            S(f"s_mov_b32 s43, 1\nv_mov_b32 v{ABR}, 0\ns_branch L_poll2k")
        COLD.append("\n".join(sub(fb2)))

    def fload(t, s):
        S(f"s_add_u32 s52, s43, {t * 32768}" if s == 0 else f"s_add_u32 s52, s52, {2 << 22}")
        a = 8 * t + 4 * s
        S.mem("vm", f"buffer_load_dwordx4 a[{a}:{a+3}], v{FV}, {srdt(S_P)}, s52 offen sc1", ("fl", t))
    PJ[84 + OPT["pk"] - OPT["p2a"]].append(poll2_issue)
    PJ[84 + OPT["pk"]].append(poll2)
    for t in range(8):
        PJ[85 + OPT["pk"] + t] += [lambda t=t: fload(t, 0), lambda t=t: fload(t, 1)]

    pend = []

    def fma_ops():
        d, w, first, fin = pend.pop(0)
        ops = []
        for r in range(4):
            ops.append(f"v_mul_f32 v{ACr[r]}, v{d+r}, v{w+r}" if first else f"v_fmac_f32 v{ACr[r]}, v{d+r}, v{w+r}")
        if fin is not None:
            ops.append(f"v_add_f32 v{ACr[0]}, v{ACr[0]}, v{ACr[1]}")
            ops.append(f"v_add_f32 v{ACr[2]}, v{ACr[2]}, v{ACr[3]}")
            ops.append(f"v_add_f32 v{ACr[0]}, v{ACr[0]}, v{ACr[2]}")
            ops.append(f"v_accvgpr_write_b32 a{252+fin}, v{ACr[0]}")
        return ops

    for gk in range(112):
        bi, k = gk // 28, gk % 28
        I, Jc = BLOCKS[k]
        if k == 0: stamp(2 + bi, 1)
        side = PJ[gk]
        if I == 0:
            S.wait("lg", ("er", bi, Jc))
        d = DT[gk % 4]
        fm = []
        if len(pend) >= 2:
            if gk - 2 < 28: S.wait("lg", ("ws", gk - 2))
            fm = fma_ops()
        for ks in range(4):
            aI, aJ = ereg(bi, I, ks), ereg(bi, Jc, ks)
            c = "0" if ks == 0 else f"v[{d}:{d+3}]"
            S(f"v_mfma_f32_16x16x32_bf16 v[{d}:{d+3}], a[{aI}:{aI+3}], a[{aJ}:{aJ+3}], {c}")
            for _ in range((len(side) + 3 - ks) // (4 - ks)): side.pop(0)()
            for _ in range((len(fm) + 3 - ks) // (4 - ks)): S(fm.pop(0))
        pend.append((d, wsreg(k), k == 0, bi if k == 27 else None))
    for o in fma_ops(): S(o)
    stamp(7)
    X, W2, Y, R0 = 64, 96, ACC + 32, ACC + 64
    S.wait("vm", "b1")
    for t in range(8):
        for r in range(4):
            src = B1R + 2 * t + (r >> 1)
            S(f"v_and_b32 v{X+4*t+r}, 0xffff0000, v{src}" if r & 1 else f"v_lshlrev_b32 v{X+4*t+r}, 16, v{src}")
    for o in fma_ops(): S(o)
    for t in range(8):
        S.wait("vm", ("fl", t))
        S(f"v_smfmac_f32_16x16x64_bf16 v[{X+4*t}:{X+4*t+3}], v[{SEL}:{SEL+3}], a[{8*t}:{8*t+7}], v{IDX}")
        for r in range(4):
            src = W2R + 2 * t + (r >> 1)
            S(f"v_and_b32 v{W2+4*t+r}, 0xffff0000, v{src}" if r & 1 else f"v_lshlrev_b32 v{W2+4*t+r}, 16, v{src}")
    for i in range(4): S(f"v_accvgpr_read_b32 v{R0+i}, a{252+i}")
    for sh in (1, 2, 4, 8):
        S("s_nop 1")
        for i in range(4):
            S(f"v_add_f32_dpp v{R0+i}, v{R0+i}, v{R0+i} row_ror:{sh} row_mask:0xf bank_mask:0xf")
    t0 = R0 + 4
    S(f"v_lshrrev_b32 v{t0}, 4, v{VL}\nv_lshlrev_b32 v{t0}, 6, v{t0}\ns_lshl_b32 s44, s3, 4\ns_add_u32 s44, s44, {FR+256}\nv_add_u32 v{t0}, s44, v{t0}")
    S.mem("lg", f"ds_write_b128 v{t0}, v[{R0}:{R0+3}]", "lpw")
    c1 = -2 * math.sqrt(2 / math.pi) * math.log2(math.e); c2 = c1 * 0.044715
    A0 = t0 + 2
    S(f"s_mov_b32 s42, {f2h(c2)}\nv_mov_b32 v{t0+1}, {f2h(c1)}\nv_mov_b32 v{A0}, 0\nv_mov_b32 v{A0+1}, 0")
    for hh in range(2):
        ks = range(16 * hh, 16 * hh + 16)
        for k in ks: S(f"v_mul_f32 v{Y+k}, v{X+k}, v{X+k}")
        for k in ks: S(f"v_fma_f32 v{Y+k}, v{Y+k}, s42, v{t0+1}")
        for k in ks: S(f"v_mul_f32 v{Y+k}, v{Y+k}, v{X+k}")
        for k in ks: S(f"v_exp_f32 v{Y+k}, v{Y+k}")
        for k in ks: S(f"v_add_f32 v{Y+k}, 1.0, v{Y+k}")
        for k in ks: S(f"v_rcp_f32 v{Y+k}, v{Y+k}")
        for k in ks: S(f"v_mul_f32 v{X+k}, v{X+k}, v{W2+k}")
        for k in ks: S(f"v_fmac_f32 v{A0 + (k & 1)}, v{X+k}, v{Y+k}")
    S(f"v_add_f32 v{A0}, v{A0}, v{A0+1}")
    S("s_nop 1")
    S(f"v_add_f32_dpp v{A0}, v{A0}, v{A0} row_ror:8 row_mask:0xf bank_mask:0xf")
    S(f"v_mov_b32 v{A0+1}, v{A0}")
    S("s_nop 1")
    S(f"v_permlane32_swap_b32 v{A0}, v{A0+1}")
    S(f"v_add_f32 v{A0}, v{A0}, v{A0+1}")
    S(f"v_and_b32 v{t0}, 7, v{VL}\nv_lshlrev_b32 v{t0}, 3, v{t0}\nv_bfe_u32 v{A0+1}, v{VL}, 4, 1\nv_lshl_add_u32 v{t0}, v{A0+1}, 2, v{t0}")
    S(f"s_lshl_b32 s44, s3, 6\ns_add_u32 s44, s44, {FR}\nv_add_u32 v{t0}, s44, v{t0}")
    S.mem("lg", f"ds_write_b32 v{t0}, v{A0}", "dw")
    S.wait("lg", "ALL")
    S("s_barrier")
    S(f"v_lshlrev_b32 v87, 2, v{VL}\nv_add_u32 v87, {ABL}, v87\nds_read_b32 v88, v87")
    S("s_cmp_lg_u32 s3, 0\ns_cbranch_scc1 L_fin")
    S(f"v_and_b32 v84, 15, v{VL}\nv_lshlrev_b32 v85, 2, v84\nv_add_u32 v85, {FR}, v85")
    for k in range(8):
        S(f"ds_read_b32 v{90+k}, v85 offset:{64*k}")
    S(f"v_lshlrev_b32 v89, 16, v{TMP+1}")
    S(f"v_lshlrev_b32 v86, 1, v84\nv_lshrrev_b32 v85, 4, v{VL}\nv_lshl_add_u32 v86, v85, 20, v86")
    S("s_waitcnt lgkmcnt(0)")
    S("v_readlane_b32 s43, v88, 8")
    for k in range(8):
        S(f"v_add_f32 v89, v89, v{90+k}")
    S("s_lshl_b32 s43, s43, 20\ns_lshl_b32 s44, s60, 5\ns_add_u32 s44, s44, s43")
    S("v_cvt_pk_bf16_f32 v89, v89, v89")
    S(f"buffer_store_short v89, v86, {srdt(S_T1)}, s44 offen")
    if OPT["stamp"]:
        S("v_add_f32 v100, v94, v95\nv_add_f32 v101, v96, v97\nv_add_f32 v100, v100, v101")
        S.srd(S_T0, P_WS, 16384, WS_LP)
        S(f"v_lshlrev_b32 v101, 2, v84\nv_lshrrev_b32 v102, 4, v{VL}\nv_lshl_add_u32 v101, v102, 20, v101\ns_lshl_b32 s44, s60, 6")
        S(f"buffer_store_dword v100, v101, {srdt(S_T0)}, s44 offen")
    S("L_fin:")
    S("s_waitcnt lgkmcnt(0)")
    S("v_cmp_ne_u32 vcc, 0, v88\ns_nop 1\ns_and_b32 s43, vcc_lo, 0xff\ns_or_b32 s43, s43, s61\ns_cmp_lg_u32 s43, 0\ns_cbranch_scc1 L_fb3")
    S("L_fin2:")

    def fb3():
        S("L_fb3:\ns_cmp_lg_u32 s61, 0\ns_cbranch_scc1 L_fb3a")
        S("v_accvgpr_write_b32 a250, v88\ns_mov_b32 s61, 1")
        S("L_fb3a:\ns_nop 1\nv_accvgpr_read_b32 v88, a250\ns_nop 1")
        S("v_cmp_ne_u32 vcc, 0, v88\ns_nop 1\ns_and_b32 s43, vcc_lo, 0xff\ns_cmp_eq_u32 s43, 0\ns_cbranch_scc1 L_fin2")
        S("s_ff1_i32_b32 s43, s43\ns_nop 3\nv_readlane_b32 s44, v88, s43\ns_nop 3")
        S("s_ff1_i32_b32 s42, s44\ns_bitset0_b32 s44, s42\ns_mov_b32 m0, s43\ns_nop 3\nv_writelane_b32 v88, s44, m0")
        S("s_lshl_b32 s60, s43, 5\ns_add_u32 s60, s60, s42\ns_nop 1\nv_accvgpr_write_b32 a250, v88")
        S("s_waitcnt vmcnt(0) lgkmcnt(0)\ns_barrier")
        S("s_lshl_b32 s59, s60, 4\ns_lshl_b32 s44, s3, 2\ns_add_u32 s59, s59, s44\ns_mul_i32 s59, s59, 400")
        S(f"s_mov_b32 s{S_P+2}, 0")
        for bi in range(2):
            for I in range(7): ixload(bi, I)
        for k in range(16): wsread(k)
        for I in range(4): pdma_rb(0, I)
        S("s_waitcnt vmcnt(0) lgkmcnt(0)\ns_branch L_RERUN")
    COLD.append("\n".join(sub(fb3)))
    if OPT["stamp"]:
        S("s_memrealtime s[100:101]")
        S("s_waitcnt lgkmcnt(0)")
        S.srd(S_T0, P_WS, 0x20000, WS_ST)
        S("s_lshl_b32 s44, s2, 2\ns_add_u32 s44, s44, s3\ns_lshl_b32 s44, s44, 6")
        S("s_mov_b64 exec, 1\nv_mov_b32 v0, s44")
        for k in range(9): S(f"v_mov_b32 v{16+k}, s{84+2*k}")
        for k in range(3):
            S(f"buffer_store_dwordx4 v[{16+4*k}:{19+4*k}], v0, {srdt(S_T0)}, 0 offen offset:{16*k}")
        if OPT["dbgt"]:
            S("v_mov_b32 v0, 0\nv_not_b32 v30, v16")
            S(f"buffer_atomic_umax v24, v0, {srdt(S_DBG)}, 0 offen offset:4 sc1")
            S(f"buffer_atomic_umax v30, v0, {srdt(S_DBG)}, 0 offen offset:8 sc1")
            for i, k in enumerate((2, 5, 3, 6, 8)):
                S(f"v_sub_u32 v{31+i}, v{16+k}, v16")
                S(f"buffer_atomic_umax v{31+i}, v0, {srdt(S_DBG)}, 0 offen offset:{12+4*i} sc1")
    S("L_END:\ns_endpgm\nL_CODE_END:")
    for c in COLD: S(c)

    items = S.resolve()
    segs = {}
    cur = -1
    for it in items:
        if isinstance(it, tuple) and it[0] == "mark":
            cur = it[1][1]
            continue
        segs.setdefault(cur, []).append(it)
    norm = lambda x: re.sub(r"_@\d+", "_lp", x)
    body = []
    n = len(segs[1])
    LS = range(1, 6)
    for sg in LS:
        assert len(segs[sg]) == n, (sg, len(segs[sg]), n)
    for i in range(n):
        its = [segs[sg][i] for sg in LS]
        if isinstance(its[0], tuple):
            assert all(x[0] == "wait" and x[1] == its[0][1] for x in its)
            vals = [x[2] for x in its if x[2] is not None]
            body.append(("wait", its[0][1], min(vals) if vals else None))
        else:
            assert all(norm(x) == norm(its[0]) for x in its), its
            body.append(norm(its[0]))
    out = []
    for sg in (-1, 0): out += flat(segs[sg])
    out += ["s_mov_b32 s38, 5", "s_nop 7"]
    if OPT["stamp"] and OPT["sm"] == 0: out += ["s_memrealtime s[94:95]"]
    if OPT["stamp"] and OPT["sm"] == 7: out += ["s_memrealtime s[86:87]", "s_memtime s[88:89]"]
    out += [".p2align 6", "L_LOOP:"]
    out += flat(body)
    out += ["s_sub_u32 s38, s38, 1", "s_cmp_lg_u32 s38, 0", "s_cbranch_scc1 L_LOOP"]
    if OPT["stamp"] and OPT["sm"] == 7: out += ["s_memrealtime s[90:91]", "s_memtime s[92:93]"]
    for sg in (6, 7, 8): out += flat(segs[sg])
    return "\n".join(out).replace("_@", "_")


def main():
    print("; generated by dev/gen6.py - deep_cross_pnn recsys, single fused kernel")
    print(f"; @launch grid=(256,1,1) block=(256,1,1) lds={LDS_SZ}")
    print('.amdgcn_target "amdgcn-amd-amdhsa--gfx950"\n.text')
    print(gen())
    print(f""".section .rodata,"a"
.p2align 6
.amdhsa_kernel {NAME}
  .amdhsa_next_free_vgpr 512
  .amdhsa_next_free_sgpr 102
  .amdhsa_accum_offset 256
  .amdhsa_group_segment_fixed_size 0
  .amdhsa_kernarg_size 80
  .amdhsa_user_sgpr_count 2
  .amdhsa_user_sgpr_kernarg_segment_ptr 1
  .amdhsa_system_sgpr_workgroup_id_x 1
  .amdhsa_float_denorm_mode_32 3
.end_amdhsa_kernel""")


main()
```

```python
import sys, struct, math, re

OPT = dict(stamp=0, sgg=2, pr=1, prt=200, pq=12, pc=19, w1e=0, wsl=17, wss=22, lat3=10, gl=12, l1=1, fl0=0, fls=1, lag=1, adf=1, ab=0, dbgt=0, sm=0, spin1=400, spin2=1000, spinw=40000, bc=1, dly=0, pfc=1, pfa=0, pfw=20, pfl=23, wo=0, early=0, sg1=0, sg2=18, pk=0, p2a=10, lat=10, clk=0)
for a in sys.argv[1:]:
    k, v = a.split("=")
    OPT[k] = int(v)

ADF = ["", " sc1", " nt", " sc0"][OPT["adf"]]
NAME = "standalone__deep_cross_pnn__recsys_kernel"

WS_ADDR = 0
WS_ADDR_SZ = 16 * 50 * 1024
WS_FL = 0x100000
WS_WS = 0x110000
WS_LP = 0x140000
WS_ST = 0x180000
WS_P = 0x200000
WS_P_SZ = 4 * 128 * 4096 * 8

TB1 = 65536
STG = 131072
STGSZ = 8448
GO = 156672
GT = GO + 3584
FR = GT + 2048
LDS_SZ = 163840

WA, WB, TRA, DMAV, ADV, VW, VL = 1, 2, 3, 4, 5, 6, 7
SEL, IDX, UA, TRB = 8, 12, 13, 15
AD, G, D, AF, ACC = 16, 32, 64, 96, 128
S_IDX, S_TAB, S_W1, S_AD, S_P, S_DBG, S_T0, S_T1 = 4, 8, 12, 16, 20, 24, 28, 32
P_IDX, P_TAB, P_WP, P_W1, P_B1, P_W2, P_B2, P_OUT, P_DBG, P_WS = 64, 66, 68, 70, 72, 74, 76, 78, 80, 82
BLOCKS = [(I, J) for J in range(7) for I in range(J + 1)]


def f2h(x):
    return "0x%08x" % struct.unpack("<I", struct.pack("<f", x))[0]


def srdt(s):
    return f"s[{s}:{s+3}]"


class Stream:
    def __init__(self):
        self.items = []
        self.nlab = 0

    def i(self, text):
        for ln in text.split("\n"):
            self.items.append(("i", ln, None, None))

    __call__ = i

    def mem(self, cls, text, tag=None, opt=False):
        self.items.append(("o" if opt else "m", text, cls, tag))

    def wait(self, cls, tag, local=False):
        self.items.append(("l" if local else "w", None, cls, tag))

    def mark(self, name):
        self.items.append(("k", name, None, None))

    def srd(self, d, base, size, off=0):
        if off:
            self.i(f"s_add_u32 s{d}, s{base}, {off}\ns_addc_u32 s{d+1}, s{base+1}, 0")
        else:
            self.i(f"s_mov_b32 s{d}, s{base}\ns_mov_b32 s{d+1}, s{base+1}")
        self.i(f"s_mov_b32 s{d+2}, {size}\ns_mov_b32 s{d+3}, 0x20000")

    def resolve(self):
        out = []
        issued = {"vm": [], "lg": []}
        done = {"vm": 0, "lg": 0}
        for kind, text, cls, tag in self.items:
            if kind == "i":
                out.append(text)
            elif kind == "k":
                out.append(("mark", text))
            elif kind in "mo":
                issued[cls].append((tag, kind == "o"))
                out.append(text)
            else:
                q = issued[cls]
                if tag == "ALL":
                    pos = len(q) - 1
                else:
                    idxs = [i for i, t in enumerate(q) if t[0] == tag]
                    assert idxs, f"wait for unknown tag {tag}"
                    pos = idxs[-1]
                n = sum(1 for t in q[pos + 1:] if not t[1])
                lim = 62 if cls == "vm" else 14
                if pos + 1 <= done[cls]:
                    out.append(("wait", cls, None))
                else:
                    out.append(("wait", cls, min(n, lim)))
                    if kind == "w": done[cls] = pos + 1
        return out


def flat(items):
    out = []
    for it in items:
        if isinstance(it, tuple):
            if it[0] == "wait" and it[2] is not None:
                out.append(f"s_waitcnt {'vmcnt' if it[1] == 'vm' else 'lgkmcnt'}({it[2]})")
        elif it:
            out.append(it)
    return out


def gen():
    S = Stream()
    COLD = []

    def sub(fn):
        keep = S.items
        S.items = []
        fn()
        out = flat(S.resolve())
        S.items = keep
        return out

    def stamp(k, mode=0):
        if OPT["stamp"] and (k in (0, 6, 7) or OPT["sm"] == mode):
            S(f"s_memrealtime s[{84+2*k}:{85+2*k}]")

    def dstamp(k, mode):
        if OPT["stamp"] and OPT["sm"] == mode:
            S(f"s_waitcnt vmcnt(0)\ns_memrealtime s[{84+2*k}:{85+2*k}]")

    GA = 128
    F, F6, TB, PSEL, OB0, OB1, LUT, C257, T, K, M1, M2, TA = 146, 147, 149, 150, 151, 152, 153, 154, 155, 156, 157, 158, 160

    def prep_loads():
        S(f"s_lshl_b32 s42, s3, 2\nv_bfe_u32 v148, v{VL}, 2, 2\nv_add_u32 v148, s42, v148")
        S("s_mul_i32 s42, s41, 96\ns_lshl_b32 s43, s3, 6\ns_add_u32 s42, s42, s43")
        S("v_lshl_add_u32 v144, v44, 2, s42")
        S(f"v_and_b32 v145, 3, v{VL}\nv_lshlrev_b32 v145, 2, v145\nv_add_u32 v145, 384, v145")
        S("v_cmp_gt_u32 vcc, 6, v148")
        S("s_mul_i32 s43, s40, 64*400")
        S("v_cndmask_b32 v144, v145, v144, vcc")
        S(f"v_lshrrev_b32 v145, 5, v{VL}\nv_lshlrev_b32 v145, 5, v145\nv_bfe_u32 v149, v{VL}, 4, 1\nv_add_u32 v145, v145, v149")
        S("v_mul_u32_u24 v145, 400, v145\nv_add_u32 v144, v144, v145")
        S("v_mov_b32 v145, 0x7ffffff0\nv_cmp_gt_u32 vcc, 7, v148")
        S("s_nop 1\nv_cndmask_b32 v144, v145, v144, vcc")
        for n in range(16):
            if n % 4 == 0 and n: S("s_add_u32 s43, s43, 3200")
            S.mem("vm", f"buffer_load_dword v{GA+n}, v144, {srdt(S_IDX)}, s43 offen offset:{(n % 4) * 800}", "prep")

    def greedy_consts():
        S(f"v_and_b32 v{F}, 3, v{VL}")
        S(f"v_lshlrev_b32 v{F6}, 6, v{F}")
        S(f"v_lshrrev_b32 v{T}, 2, v{VL}")
        S(f"s_lshl_b32 s42, s3, 10\ns_add_u32 s42, s42, {GT}")
        S(f"v_lshl_add_u32 v{TB}, v{T}, 6, s42")
        S(f"v_add_u32 v{K}, s42, v{ADV}\nv_mov_b64 v[{TA}:{TA+1}], 0\nv_mov_b64 v[{TA+2}:{TA+3}], 0")
        S.mem("lg", f"ds_write_b128 v{K}, v[{TA}:{TA+3}]", "gz")
        S(f"v_mul_u32_u24 v{PSEL}, 0x010101, v{F}\nv_lshl_or_b32 v{PSEL}, v{F}, 24, v{PSEL}\nv_xor_b32 v{PSEL}, 0x03020100, v{PSEL}")
        S(f"v_cmp_gt_u32 vcc, 7, v148\nv_mov_b32 v{K}, 0x4000")
        S(f"v_lshlrev_b32 v{OB0}, 2, v45\nv_cndmask_b32 v{T}, v{K}, v148, vcc")
        S(f"v_lshl_add_u32 v{OB0}, v{T}, 9, v{OB0}\nv_add_u32 v{OB0}, {GO}, v{OB0}")
        S(f"v_xor_b32 v{OB1}, 0x100, v{OB0}")
        S(f"s_mov_b32 s62, 0x24100400\ns_mov_b32 s63, 0x102\nv_mov_b32 v{LUT}, 0x3c3c3c3c\nv_mov_b32 v{C257}, 0x101")

    TAB = 176
    KK = [156, 164]

    def ga(n):
        r = GA + n
        if n == 0: S.wait("vm", "prep"); stamp(3, 2)
        S(f"v_and_b32 v{T}, 7, v{r}")
        S(f"v_lshrrev_b32 v{r}, 2, v{r}")
        S(f"v_lshlrev_b32 v{T}, 4, v{T}")
        S(f"v_xor_b32 v{T}, v{T}, v{F6}")
        S(f"v_lshl_add_u32 v{r}, v{r}, 8, v{T}")
        S(f"v_lshrrev_b32 v{T}, 2, v{T}")
        S(f"v_add_u32 v{TAB + n}, v{T}, v{TB}")

    def g_read(n):
        S.mem("lg", f"ds_read_b32 v{KK[n & 1]}, v{TAB + n}", ("gr", n))

    def g_chain(n):
        k = KK[n & 1]; m1, m2 = k + 1, k + 2
        tie = 0x03020100 if (n & 1) == 0 else 0x02030001
        L = [f"v_perm_b32 v{k}, v{LUT}, s62, v{k}",
             f"v_perm_b32 v{k}, v{k}, v{k}, v{PSEL}",
             "s_nop 0",
             f"v_add_u32_dpp v{k}, v{k}, v{k} quad_perm:[1,0,3,2] row_mask:0xf bank_mask:0xf",
             "s_nop 0",
             f"v_add_u32_dpp v{k}, v{k}, v{k} quad_perm:[2,3,0,1] row_mask:0xf bank_mask:0xf",
             f"v_add_u32 v{k}, {tie}, v{k}",
             f"v_min_u32_sdwa v{m1}, v{k}, v{k} dst_sel:DWORD dst_unused:UNUSED_PAD src0_sel:BYTE_0 src1_sel:BYTE_1",
             f"v_min_u32_sdwa v{m2}, v{k}, v{k} dst_sel:DWORD dst_unused:UNUSED_PAD src0_sel:BYTE_2 src1_sel:BYTE_3",
             f"v_min_u32 v{m1}, v{m1}, v{m2}",
             f"v_bitop3_b32 v{m1}, v{m1}, 3, v{F + 21 * (n & 1)} bitop3:0x6a"]
        return L

    def g_upd(n):
        k = KK[n & 1]; m1, m2 = k + 1, k + 2
        S(f"v_lshlrev_b32 v{m2}, 3, v{m1}")
        S(f"v_lshlrev_b32 v{m2}, v{m2}, 1")
        S.mem("lg", f"ds_add_u32 v{TAB + n}, v{m2}", "gadd")

    def g_out(n):
        k = KK[n & 1]; m1 = k + 1
        S(f"v_mul_u32_u24 v{m1}, v{m1}, v{C257}")
        mid = 1 if 4 <= n <= 11 else 0
        S(f"v_bitop3_b32 v{m1}, v{m1}, s63, v{OB0 + mid} bitop3:0x6a")
        S.mem("lg", f"ds_write_b16 v{m1}, v{GA+n} offset:{16*n}", "gw")

    def greedy(mid=None):
        S(f"v_xor_b32 v{F+21}, 1, v{F}")
        for n in range(4):
            ga(n)
            S(f"v_xor_b32 v{KK[n & 1]+1}, {n}, v{F}")
            g_upd(n); g_out(n)
        ga(4); ga(5)
        for n in range(4, 16, 2):
            g_read(n); g_read(n + 1)
            if n == 6 and mid: mid()
            if n >= 6: g_out(n - 2); g_out(n - 1)
            if n + 2 < 16: ga(n + 2); ga(n + 3)
            S.wait("lg", ("gr", n + 1))
            for x, y in zip(g_chain(n), g_chain(n + 1)):
                S(x)
                if not x.startswith("s_nop"): S(y)
            g_upd(n); g_upd(n + 1)
        g_out(14); g_out(15)
        S.wait("lg", "ALL")

    def prep_store():
        S(f"s_lshl_b32 s42, s3, 11\ns_add_u32 s42, s42, {GO}\nv_add_u32 v144, s42, v{ADV}")
        for i in range(2):
            S.mem("lg", f"ds_read_b128 v[{128+4*i}:{131+4*i}], v144 offset:{1024*i}", "go")
        S("s_lshr_b32 s42, s40, 4\ns_lshl_b32 s43, s41, 2\ns_add_u32 s42, s42, s43\ns_mul_i32 s42, s42, 50")
        S("s_lshr_b32 s43, s40, 1\ns_lshl_b32 s44, s41, 1\ns_sub_u32 s43, s43, s44\ns_sub_u32 s43, s43, 2\ns_and_b32 s43, s43, 7")
        S("s_add_u32 s42, s42, s43\ns_lshl_b32 s42, s42, 10")
        S("s_and_b32 s44, s40, 1\ns_lshl_b32 s44, s44, 9\ns_add_u32 s42, s42, s44")
        S("s_lshl_b32 s44, s3, 15\ns_add_u32 s42, s42, s44")
        S(f"v_and_b32 v145, 31, v{VL}\nv_lshlrev_b32 v145, 4, v145")
        S(f"v_lshrrev_b32 v146, 5, v{VL}\nv_lshl_add_u32 v145, v146, 13, v145")
        S("s_cmp_ge_u32 s43, 6\ns_cselect_b32 s44, 32, 0\ns_cmp_eq_u32 s3, 0\ns_cselect_b32 s44, 64, s44\ns_cselect_b32 s43, 0, 6144")
        S(f"v_cmp_gt_u32 vcc, s44, v{VL}\nv_mov_b32 v146, 0x7ffffff0")
        S.wait("lg", "go")
        S("v_cndmask_b32 v146, v146, v145, vcc")
        S.mem("vm", f"buffer_store_dwordx4 v[128:131], v145, {srdt(S_AD)}, s42 offen sc1", "pst")
        S("s_add_u32 s42, s42, 16384\ns_sub_u32 s42, s42, s43")
        S.mem("vm", f"buffer_store_dwordx4 v[132:135], v146, {srdt(S_AD)}, s42 offen sc1", "pst")

    def ws_loads(lab):
        S(f"s_cmp_lt_u32 s3, 2\ns_cbranch_scc1 {lab}")
        S("s_and_b32 s52, s3, 1\ns_lshl_b32 s52, s52, 6\ns_add_u32 s52, s52, s40\ns_lshr_b32 s44, s52, 2")
        S("s_mov_b32 s43, 0")
        for J in range(1, 8):
            S(f"s_cmp_ge_u32 s44, {J*(J+1)//2}\ns_cselect_b32 s43, {J}, s43")
        S("s_add_u32 s42, s43, 1\ns_mul_i32 s42, s42, s43\ns_lshr_b32 s42, s42, 1\ns_sub_u32 s42, s44, s42")
        S("s_cmp_eq_u32 s42, s43\ns_cselect_b32 s44, 0x100000, 0")
        S("s_lshl_b32 s42, s42, 2\ns_and_b32 s57, s52, 3\ns_add_u32 s42, s42, s57")
        S(f"v_bfe_u32 v32, v{VL}, 2, 2\nv_mul_u32_u24 v32, 25, v32\nv_lshl_add_u32 v33, s43, 2, v45\nv_add_u32 v32, v32, v33")
        S(f"v_and_b32 v34, 3, v{VL}\nv_mul_u32_u24 v34, 25, v34\nv_add_u32 v34, s42, v34")
        S("v_max_u32 v33, s42, v33\nv_cmp_gt_u32 vcc, 25, v33")
        S("v_mul_u32_u24 v33, 100, v34\nv_add_lshl_u32 v33, v33, v32, 1")
        S("v_mul_u32_u24 v35, 100, v32\nv_add_lshl_u32 v35, v35, v34, 1")
        S("v_mov_b32 v32, 0x7ff00000\nv_cndmask_b32 v33, v32, v33, vcc\nv_cndmask_b32 v35, v32, v35, vcc")
        S.srd(S_T0, P_WP, 20000)
        S.mem("vm", f"buffer_load_ushort v36, v33, {srdt(S_T0)}, 0 offen", "wsl", opt=True)
        S.mem("vm", f"buffer_load_ushort v37, v35, {srdt(S_T0)}, s44 offen", "wsl", opt=True)
        S("s_mov_b32 s57, s52")
        S(f"{lab}:")

    def ws_store(lab):
        S(f"s_cmp_lt_u32 s3, 2\ns_cbranch_scc1 {lab}")
        S.srd(S_T0, P_WS, 4 * 32768, WS_WS)
        S(f"s_lshl_b32 s44, s41, 15\ns_lshl_b32 s43, s57, 8\ns_add_u32 s44, s44, s43\nv_lshlrev_b32 v38, 2, v{VL}")
        S.wait("vm", "wsl", local=True)
        S("v_lshlrev_b32 v36, 16, v36\nv_lshlrev_b32 v37, 16, v37\nv_add_f32 v36, v36, v37")
        S.mem("vm", f"buffer_store_dword v36, v38, {srdt(S_T0)}, s44 offen sc1", "wss", opt=True)
        S(f"{lab}:")

    def ws_sig(lab):
        S(f"s_cmp_lt_u32 s3, 2\ns_cbranch_scc1 {lab}")
        S.wait("vm", "wss", local=True)
        S("s_lshl_b32 s42, s41, 6\ns_add_u32 s42, s42, s40\ns_lshl_b32 s42, s42, 4\ns_and_b32 s43, s3, 1\ns_lshl_b32 s43, s43, 3\ns_add_u32 s42, s42, s43")
        S(f"v_mov_b32 v{D}, s56\nv_lshlrev_b32 v{D+1}, 20, v{VL}")
        S.mem("vm", f"buffer_store_dword v{D}, v{D+1}, {srdt(S_T1)}, s42 offen offset:4 sc1", "sigw", opt=True)
        S(f"{lab}:")

    S(f".globl {NAME}\n.p2align 8\n.type {NAME},@function\n{NAME}:")
    S("s_cmp_ge_u32 s2, 256\ns_cbranch_scc1 L_END")
    stamp(0)
    if OPT["dly"]:
        S(f"s_cmp_lt_u32 s2, 128\ns_cbranch_scc1 L_dl2\ns_mov_b32 s40, {OPT['dly']}\nL_dl1:\ns_sleep 127\ns_sub_u32 s40, s40, 1\ns_cmp_lg_u32 s40, 0\ns_cbranch_scc1 L_dl1\nL_dl2:")
    S("s_load_dwordx16 s[64:79], s[0:1], 0")
    S("s_load_dwordx4 s[80:83], s[0:1], 64")
    S(f"v_lshrrev_b32 v{VW}, 6, v0")
    S(f"v_and_b32 v{VL}, 63, v0")
    if OPT["pfc"]:
        S(f"s_getpc_b64 s[{S_T0}:{S_T0+1}]\nL_PC:\ns_mov_b32 s{S_T0+2}, L_CODE_END-L_PC\ns_mov_b32 s{S_T0+3}, 0x20000")
        S("v_lshrrev_b32 v47, 3, v0\nv_lshlrev_b32 v46, 7, v0\nv_lshl_add_u32 v46, v47, 20, v46\ns_lshr_b32 s44, s2, 3\ns_lshl_b32 s44, s44, 10")
        S(f"buffer_load_dword v47, v46, {srdt(S_T0)}, s44 offen")
    S(f"v_readfirstlane_b32 s3, v{VW}")
    S("s_and_b32 s36, s2, 7\ns_lshl_b32 s36, s36, 3\ns_bfe_u32 s37, s2, 0x30003\ns_add_u32 s36, s36, s37")
    S("s_lshr_b32 s37, s2, 6")
    S("s_lshr_b32 s40, s2, 2\ns_and_b32 s41, s2, 3")
    S(f"v_lshlrev_b32 v{ADV}, 4, v{VL}")
    S("s_lshl_b32 s38, s36, 4\ns_lshl_b32 s39, s3, 17\ns_add_u32 s38, s38, s39")
    S(f"v_lshl_add_u32 v{DMAV}, v{VL}, 10, s38")
    S("s_mul_i32 s45, s37, 24*131072")
    S("s_add_u32 s46, s45, 24*131072")
    S(f"s_mul_i32 s47, s3, 2112\ns_add_u32 s47, s47, {STG}")
    S(f"s_add_u32 s48, s47, {3*STGSZ}")
    S("s_mov_b32 s49, s3")
    S(f"v_and_b32 v44, 15, v{VL}\nv_lshrrev_b32 v45, 4, v{VL}")
    for jj in range(4):
        S(f"v_add_u32 v{40+jj}, {4*jj}, v45\nv_xor_b32 v{40+jj}, v{40+jj}, v44\nv_lshlrev_b32 v{40+jj}, 4, v{40+jj}")
        S(f"v_lshl_add_u32 v{40+jj}, v45, 8, v{40+jj}")
    S("s_lshl_b32 s50, s3, 16")
    S("s_lshl_b32 s51, s3, 14")
    S(f"v_lshlrev_b32 v46, 7, v{VL}")
    S("s_waitcnt lgkmcnt(0)")

    def srds():
        S.srd(S_TAB, P_TAB, 256000)
        S.srd(S_W1, P_W1, 12800 * 1024)
        S.srd(S_DBG, P_DBG, 256)

    def pft():
        S(f"v_mov_b32 v49, 0x7ff00000\nv_cmp_gt_u32 vcc, 32, v{VL}")
        S("s_lshr_b32 s44, s2, 3\ns_lshl_b32 s44, s44, 13\ns_and_b32 s52, s3, 1\ns_lshl_b32 s52, s52, 12\ns_add_u32 s44, s44, s52")
        S("v_cndmask_b32 v48, v49, v46, vcc")
        S.mem("vm", f"buffer_load_dword v47, v48, {srdt(S_TAB)}, s44 offen", "pft")

    def pfw(ph):
        S("s_and_b32 s52, s36, 7\ns_lshl_b32 s52, s52, 16\ns_lshl_b32 s44, s36, 4\ns_add_u32 s52, s52, s44")
        if ph <= 0:
            S(f"v_and_b32 v48, 31, v{VL}\nv_lshlrev_b32 v48, 10, v48\nv_lshrrev_b32 v49, 5, v{VL}\nv_lshl_add_u32 v48, v49, 19, v48")
            S("s_and_b32 s44, s3, 1\ns_lshl_b32 s44, s44, 15\ns_add_u32 s52, s52, s44\ns_add_u32 s52, s52, s45")
            if ph: S(f"s_add_u32 s52, s52, {-ph*4*131072}")
            if not OPT["w1e"]: S(f"v_lshlrev_b32 v49, 25, v49\nv_add_u32 v48, v48, v49")
            S.mem("vm", f"buffer_load_dword v47, v48, {srdt(S_W1)}, s52 offen", "pfw")
        else:
            S(f"v_lshlrev_b32 v0, 10, v44\nv_lshl_add_u32 v0, v45, 19, v0\nv_mov_b32 v49, 0x7ff00000\nv_cmp_gt_u32 vcc, 48, v{VL}\ns_nop 1\nv_cndmask_b32 v0, v49, v0, vcc")
            S("s_lshl_b32 s44, s3, 14\ns_add_u32 s52, s52, s44")
            if ph < 6:
                S(f"s_mul_i32 s44, s37, 24*131072\ns_add_u32 s52, s52, s44\ns_add_u32 s52, s52, {ph*4*131072}")
            else:
                S("s_add_u32 s52, s52, 96*131072")
            S.mem("vm", f"buffer_load_dword v{VW}, v0, {srdt(S_W1)}, s52 offen", "pfw")

    def misc_loads():
        S.srd(S_T0, P_WP, 20000)
        S(f"v_mov_b32 v49, 0x7ff00000\nv_cmp_gt_u32 vcc, 3, v{VL}")
        S("s_lshr_b32 s44, s2, 3\ns_lshl_b32 s44, s44, 1\ns_add_u32 s44, s44, s3\ns_mul_i32 s44, s44, 384")
        S("v_cndmask_b32 v48, v49, v46, vcc")
        S.mem("vm", f"buffer_load_dword v47, v48, {srdt(S_T0)}, s44 offen", "pfp")
        for pp, sz in ((P_B1, 1024), (P_W2, 1024), (P_B2, 2)):
            S.srd(S_T0, pp, sz)
            S.mem("vm", f"buffer_load_ushort v47, v46, {srdt(S_T0)}, 0 offen", "pfp")
        S("s_cmp_lt_u32 s2, 8\ns_cselect_b32 s44, s3, 0\ns_cmp_eq_u32 s44, 1\ns_cbranch_scc0 L_nn")
        S("s_memrealtime s[42:43]\ns_waitcnt lgkmcnt(0)\ns_or_b32 s42, s42, 1")
        S(f"v_mov_b32 v48, s42\nv_mov_b32 v49, 0\nv_lshlrev_b32 v50, 20, v{VL}")
        S.mem("vm", f"buffer_atomic_cmpswap v[48:49], v50, {srdt(S_DBG)}, 0 offen sc1", "nn", opt=True)
        S("L_nn:")

    def pfi():
        S(f"v_cmp_gt_u32 vcc, 14, v{VL}\ns_lshl_b32 s44, s2, 2\ns_add_u32 s44, s44, s3\ns_mul_i32 s44, s44, 1600")
        S("v_mov_b32 v49, 0x7ff00000\nv_cndmask_b32 v48, v49, v46, vcc")
        S.mem("vm", f"buffer_load_dword v{VW}, v48, {srdt(S_IDX)}, s44 offen", "pfi")

    def wdma(half, tag, opt=False):
        if half == 0:
            S("s_mov_b32 m0, s47\ns_nop 0")
            S.mem("vm", f"buffer_load_dwordx4 v{DMAV}, {srdt(S_W1)}, s45 offen lds", tag, opt)
        else:
            S("s_add_u32 m0, s47, 1024\ns_add_u32 s44, s45, 65536")
            S.mem("vm", f"buffer_load_dwordx4 v{DMAV}, {srdt(S_W1)}, s44 offen lds", tag, opt)

    def wdma_adv():
        S(f"s_add_u32 s47, s47, {STGSZ}")
        S("s_cmp_eq_u32 s47, s48")
        S(f"s_cselect_b32 s44, {3*STGSZ}, 0\ns_sub_u32 s47, s47, s44")
        S("s_add_u32 s45, s45, 4*131072")
        S("s_cmp_eq_u32 s45, 100*131072\ns_cselect_b32 s49, 0xff, s49")
        S("s_cmp_eq_u32 s45, s46\ns_cselect_b32 s45, 96*131072, s45")

    def wsite(k, tag):
        S.nlab += 1
        lab = f"L_ws{k}_@{S.nlab}"
        S(f"s_cmp_eq_u32 s49, {k & 3}\ns_cbranch_scc0 {lab}")
        wdma(k >> 2, tag, True)
        S(f"{lab}:")

    TSL = [0, 8192, TB1, TB1 + 8192, 8192, TB1, TB1 + 8192, TB1]

    def tdma(nb, j):
        if j % 2 == 0:
            S(f"s_add_u32 m0, s51, {TSL[nb] + (j & ~3) * 1024}")
            S(f"s_add_u32 s52, s50, {(nb * 8 + (j & ~3)) * 1024}")
        S.mem("vm", f"buffer_load_dwordx4 v{40 + (j & 3)}, {srdt(S_TAB)}, s52 offen offset:{(j & 3) * 1024} lds", ("td", nb))

    def consts():
        S.srd(S_AD, P_WS, WS_ADDR_SZ, WS_ADDR)
        S.srd(S_P, P_WS, WS_P_SZ, WS_P)
        S.srd(S_T1, P_WS, 8192, WS_FL)
        S(f"v_and_b32 v13, 31, v{VL}\nv_lshrrev_b32 v14, 2, v13\nv_and_b32 v13, 3, v13")
        S("v_lshlrev_b32 v13, 4, v13\nv_lshl_add_u32 v13, v14, 8, v13")
        S(f"v_lshrrev_b32 v15, 5, v{VL}\nv_lshl_add_u32 v13, v15, 7, v13")
        S(f"v_lshl_add_u32 v13, v{VW}, 14, v13")
        S("v_and_b32 v14, 1, v14")
        S(f"v_lshl_add_u32 v{WA}, v14, 6, v13")
        S(f"v_xor_b32 v{WB}, 64, v{WA}")
        S(f"v_xor_b32 v13, v44, v15\nv_lshlrev_b32 v13, 4, v13\nv_and_b32 v14, 31, v{VL}\nv_lshl_add_u32 v13, v14, 8, v13")
        S(f"v_lshl_add_u32 v32, v{VW}, 14, v13")
        for ks in range(1, 8):
            S(f"v_xor_b32 v{32+ks}, {32*ks}, v32")
        for ks in range(8):
            S(f"v_xor_b32 v{56+ks}, 0x10000, v{32+ks}")
        S(f"v_and_b32 v13, 1, v{VL}\nv_bfe_u32 v14, v{VL}, 4, 1\nv_lshl_add_u32 v13, v13, 1, v14")
        S("v_mul_u32_u24 v13, 2112, v13")
        S(f"v_bfe_u32 v14, v{VL}, 2, 2\nv_lshl_add_u32 v14, v15, 3, v14\nv_lshl_add_u32 v13, v14, 4, v13")
        S(f"v_bfe_u32 v14, v{VL}, 1, 1\nv_lshl_add_u32 v13, v14, 3, v13")
        S(f"v_add_u32 v{TRA}, {STG}, v13")
        S(f"v_mov_b32 v{TRB}, v{TRA}")
        S(f"v_bfe_u32 v13, v{VL}, 4, 1\nv_bfe_u32 v14, v{VL}, 3, 1\nv_cmp_eq_u32 vcc, v13, v14")
        S(f"v_mov_b32 v13, 0x3f80\nv_bfe_u32 v14, v{VL}, 2, 1")
        S("v_cndmask_b32 v13, 0, v13, vcc")
        S("v_cmp_eq_u32 vcc, 0, v14")
        S("s_nop 1")
        S(f"v_cndmask_b32 v{SEL}, 0, v13, vcc")
        S(f"v_xor_b32 v{SEL+1}, v{SEL}, v13")
        S(f"v_mov_b32 v{SEL+2}, v{SEL}\nv_mov_b32 v{SEL+3}, v{SEL+1}")
        S(f"v_and_b32 v13, 3, v{VL}")
        S(f"v_mul_u32_u24 v{IDX}, 0x5555, v13")
        S("s_mov_b32 s53, 0x110000\ns_mov_b32 s54, 0")
        S("s_lshl_b32 s55, s37, 2\ns_add_u32 s55, s55, s3\ns_mul_i32 s55, s55, 51200")
        S("s_mov_b32 s60, s2\ns_mov_b32 s61, 0\nv_mov_b32 v50, 0")

    main_items = S.items
    S.items = []
    S.srd(S_IDX, P_IDX, 4096 * 400)
    prep_loads()
    stamp(4, 2)
    srds()
    misc_loads()
    consts()
    if OPT["early"] == 1: pfw(-2)
    greedy_consts()
    stamp(1); stamp(5, 2)
    greedy(lambda: S(f"buffer_load_dword v51, v50, {srdt(S_DBG)}, 0 offen sc1"))
    prep_store()
    stamp(1, 2)
    for j in range(8): tdma(1, j)
    stamp(2, 2)
    g_code = flat(S.resolve())
    S.items = []
    srds()
    S.srd(S_IDX, P_IDX, 4096 * 400)
    consts()
    pft(); pfw(0)
    S("s_sub_u32 s50, s50, 0x20000\ns_sub_u32 s51, s51, 0x8000\ns_sub_u32 s47, s47, 4224\ns_mov_b32 s39, 2")
    S(f"v_subrev_u32 v{DMAV}, 0x40000, v{DMAV}")
    stamp(3, 2)
    S("L_ld:")
    for j in range(8): tdma(0, j)
    wdma(0, None); wdma(1, None)
    S("s_add_u32 s50, s50, 0x20000\ns_add_u32 s51, s51, 0x8000\ns_add_u32 s47, s47, 4224")
    S(f"v_add_u32 v{DMAV}, 0x40000, v{DMAV}")
    S("s_sub_u32 s39, s39, 1\ns_cmp_lg_u32 s39, 0\ns_cbranch_scc1 L_ld")
    S("s_sub_u32 s50, s50, 0x20000\ns_sub_u32 s51, s51, 0x8000\ns_sub_u32 s47, s47, 4224")
    S(f"v_subrev_u32 v{DMAV}, 0x40000, v{DMAV}")
    stamp(1); stamp(4, 2)
    if not OPT["w1e"]: pfw(-1)
    S(f"buffer_load_dword v51, v50, {srdt(S_DBG)}, 0 offen sc1")
    for j in range(8): tdma(1, j)
    stamp(1, 2)
    S(f"s_waitcnt vmcnt({9 if OPT['w1e'] else 10})")
    stamp(2, 2)
    l_code = flat(S.resolve())
    S.items = main_items
    S("s_cmp_ge_u32 s3, 2\ns_cbranch_scc1 L_loader")
    for x in g_code: S(x)
    S("s_branch L_join\nL_loader:")
    for x in l_code: S(x)
    S("L_join:")
    S.mem("vm", "", "nld")
    for j in range(8): S.mem("vm", "", ("td", 1))
    wdma_adv()
    S("s_barrier")
    stamp(2)

    def adload(c):
        r = AD + (c & 3) * 4
        S.mem("vm", f"buffer_load_dwordx4 v[{r}:{r+3}], v{ADV}, {srdt(S_AD)}, s55 offen offset:{(c & 3) * 1024}{ADF}", ("ad", c))
        if (c & 3) == 3:
            S("s_add_u32 s55, s55, 4096")

    def trread(ks, half, tag):
        r = AF + ks * 4 + half * 2
        S.mem("lg", f"ds_read_b64_tr_b16 v[{r}:{r+1}], v{TRA} offset:{ks*256 + half*64}", tag)

    def tr_advance():
        S(f"s_add_u32 s54, s54, {STGSZ}")
        S(f"s_cmp_eq_u32 s54, {3*STGSZ}")
        S("s_cselect_b32 s54, 0, s54")
        S(f"v_add_u32 v{TRA}, s54, v{TRB}")

    def tread(nb, ks):
        if ks == 0 and nb >= 1:
            S.wait("vm", ("td", nb))
        k = nb * 8 + ks
        S.mem("lg", f"ds_read_b128 a[{4*k}:{4*k+3}], v{(56 if TSL[nb] >= TB1 else 32)+ks} offset:{TSL[nb] & 0xffff}", ("tr", nb, ks))

    for ks in range(8):
        for h in range(2): trread(ks, h, ("af", 0, ks))
        tread(0, ks)
    tr_advance()

    OFF = 38
    G0 = -6
    NT = 6 * 32 + 8

    def C(tile, i):
        d = D + (tile & 1) * 16 + (i >> 2) * 8
        i &= 3
        S(f"v_cvt_pk_bf16_f32 v{d+i}, v{d+2*i}, v{d+2*i+1}")

    def W(tile, h, tag):
        d = D + (tile & 1) * 16 + h * 8
        S.mem("lg", f"ds_write_b128 v{WB if h else WA}, v[{d}:{d+3}] offset:{(tile & 7)*2048}", tag)

    def U(gt):
        if not (G0 + 4 <= gt < NT): return
        c = gt >> 2
        if gt % 32 == 0:
            S("s_xor_b32 s53, s53, 0x10000\ns_and_b32 s53, s53, 0x10000")
        if (gt & 3) == 0:
            S.wait("vm", ("ad", c))
        a = AD + (c & 3) * 4 + (gt & 3)
        S(f"v_add_u32_sdwa v{UA}, v{a}, s53 dst_sel:DWORD dst_unused:UNUSED_PAD src0_sel:WORD_0 src1_sel:DWORD")
        S(f"v_add_u32_sdwa v{UA+1}, v{a}, s53 dst_sel:DWORD dst_unused:UNUSED_PAD src0_sel:WORD_1 src1_sel:DWORD")

    def R(gt):
        if not (G0 + 3 <= gt < NT): return
        g = G + (gt & 3) * 8
        S.mem("lg", f"ds_read_b128 v[{g}:{g+3}], v{UA}", ("g", gt))
        S.mem("lg", f"ds_read_b128 v[{g+4}:{g+7}], v{UA+1}", ("g", gt))

    def SM(gt):
        if not (G0 <= gt < NT): return
        S.wait("lg", ("g", gt))
        g = G + (gt & 3) * 8
        a = ACC + ((gt & 31) + (24 if gt >= 192 else 0)) * 4
        S(f"v_smfmac_f32_16x16x64_bf16 v[{a}:{a+3}], v[{SEL}:{SEL+3}], v[{g}:{g+7}], v{IDX}")

    def M(p, nb, ks):
        if p is None: return
        if p == 0:
            S.wait("lg", ("tr", nb, ks))
        if nb == 0:
            S.wait("lg", ("af", p, ks))
        d = D + (nb & 1) * 16
        k = nb * 8 + ks
        c = "0" if ks == 0 else f"v[{d}:{d+15}]"
        S(f"v_mfma_f32_32x32x16_bf16 v[{d}:{d+15}], v[{AF+4*ks}:{AF+4*ks+3}], a[{4*k}:{4*k+3}], {c}")

    def pk(tq, i):
        a = ACC + tq * 16
        S(f"v_cvt_pk_bf16_f32 v{a+i}, v{a+2*i}, v{a+2*i+1}")

    LP, FA, FB, F6R = ACC, ACC + 4, ACC + 8, ACC + 12
    DT = [ACC + 16, ACC + 20, ACC + 24, ACC + 28]
    IXR = ACC + 32
    IXV, STV = TRB, DMAV
    TMP = ACC + 88

    def wsreg(k):
        return 64 + 4 * k if k < 16 else 16 + 4 * (k - 16)

    SEQ = {(b, I): 7 * b + I for b in range(4) for I in range(7)}
    SLOT = {}
    PREVOCC = {}

    def pnn_consts(part):
        t0, t1 = F6R, F6R + 1
        if part == 0:
            S(f"v_and_b32 v{t0}, 15, v{VL}\nv_lshrrev_b32 v{t1}, 4, v{VL}")
            S(f"s_add_u32 s57, s51, {TB1}")
            S(f"s_sub_u32 s{S_TAB}, s{P_TAB}, 3072\ns_subb_u32 s{S_TAB+1}, s{P_TAB+1}, 0")
            S(f"s_mov_b32 s{S_TAB+2}, {256000 + 3072}\ns_mov_b32 s{S_TAB+3}, 0x20000")
            S(f"v_xor_b32 v{LP}, v{t1}, v{t0}\nv_lshlrev_b32 v{LP}, 4, v{LP}")
            S(f"v_lshl_add_u32 v{FB}, v{t0}, 8, v{LP}\nv_add_u32 v{FB}, s51, v{FB}")
        elif part == 1:
            for jj in (3, 2, 1, 0):
                S(f"v_xor_b32 v{LP+jj}, {64*jj}, v{LP}")
                if jj < 3: S(f"v_add_u32 v{LP+jj}, {3072 - 1024*jj}, v{LP+jj}")
        elif part == 2:
            for ks in range(1, 4): S(f"v_xor_b32 v{FB+ks}, {64*ks}, v{FB}")
            for ks in range(4): S(f"v_xor_b32 v{FA+ks}, 0x10000, v{FB+ks}")
        else:
            S(f"v_cmp_gt_u32 vcc, 4, v{t0}\nv_mov_b32 v{F6R+3}, 0x100000\ns_nop 0")
            for ks in range(4):
                S(f"v_cndmask_b32 v{F6R+ks}, v{F6R+3}, v{FA+ks}, vcc")

    def ixreg(bi, I):
        return IXR + 4 * (SEQ[(bi, I)] % 14)

    def ixload(bi, I):
        r = ixreg(bi, I)
        if I < 6:
            S.mem("vm", f"buffer_load_dwordx4 v[{r}:{r+3}], v{IXV}, {srdt(S_IDX)}, s59 offen offset:{400*bi + 16*I}", ("ix", bi, I))
        else:
            S.mem("vm", f"buffer_load_dword v{r}, v{IXV}, {srdt(S_IDX)}, s59 offen offset:{400*bi + 96}", ("ix", bi, I))

    def pdma(bi, I, jj):
        r = ixreg(bi, I) + jj
        sl = SLOT[(bi, I)]
        if jj == 0:
            if PREVOCC[(bi, I)]: S.wait("lg", ("er",) + PREVOCC[(bi, I)])
            S.wait("vm", ("ix", bi, I))
            S(f"s_add_u32 m0, s57, {sl*4096}" if sl < 4 else f"s_add_u32 m0, s51, {(sl-4)*4096}")
        S(f"v_lshl_add_u32 v{r}, v{r}, 8, v{LP+jj}")
        S.mem("vm", f"buffer_load_dwordx4 v{r}, {srdt(S_TAB)}, 0 offen offset:{jj*1024} lds", ("pd", bi, I))

    def store_setup():
        S(f"v_and_b32 v{STV}, 15, v{VL}\nv_lshlrev_b32 v{STV}, 4, v{STV}")
        S(f"v_bfe_u32 v0, v{VL}, 4, 1\nv_lshl_add_u32 v{STV}, v0, 15, v{STV}")
        S(f"v_lshrrev_b32 v0, 5, v{VL}\nv_lshl_add_u32 v{STV}, v0, 9, v{STV}")
        S("s_lshl_b32 s45, s37, 22\ns_lshl_b32 s46, s36, 16\ns_add_u32 s45, s45, s46")
        S("s_lshl_b32 s46, s3, 13\ns_add_u32 s45, s45, s46")
        S("s_lshl_b32 s46, s37, 1\ns_add_u32 s46, s46, 2")

    def pstore(tq, h):
        if h == 0:
            S(f"s_add_u32 s47, s46, {tq}\ns_and_b32 s47, s47, 7\ns_lshl_b32 s47, s47, 10\ns_add_u32 s47, s47, s45")
        a = ACC + 16 * tq + 4 * h
        S.mem("vm", f"buffer_store_dwordx4 v[{a}:{a+3}], v{STV}, {srdt(S_P)}, s47 offen offset:{256*h} sc1", "pstore")

    def ereg(bi, I, ks):
        return (bi & 1) * 112 + (I * 4 + ks) * 4

    def eread(bi, I, ks):
        if ks == 0:
            S.wait("vm", ("pd", bi, I))
        a = ereg(bi, I, ks)
        sl = SLOT[(bi, I)]
        adr = (F6R if I == 6 else FA if sl < 4 else FB) + ks
        off = (sl & 3) * 4096
        S.mem("lg", f"ds_read_b128 a[{a}:{a+3}], v{adr} offset:{off}", ("er", bi, I))

    def wsdma(i):
        if i == 0:
            S.srd(S_T0, P_WS, 4 * 32768, WS_WS)
            S(f"s_lshl_b32 s48, s37, 15\ns_mul_i32 s44, s3, 7168\ns_add_u32 s48, s48, s44\ns_add_u32 s49, s44, {STG}")
        if i % 4 == 0:
            S(f"s_add_u32 m0, s49, {i*1024}\ns_add_u32 s50, s48, {i*1024}")
        S.mem("vm", f"buffer_load_dwordx4 v{ADV}, {srdt(S_T0)}, s50 offen offset:{(i & 3)*1024} sc1 lds", "wsd")

    def wsread(k):
        r = wsreg(k)
        S.mem("lg", f"ds_read_b128 v[{r}:{r+3}], v{TRA} offset:{1024*k}", ("ws", k))

    J = {}

    def job(pi, gap, f):
        J.setdefault((pi, gap), []).append(f)

    def gjob(seg, g, f):
        job(seg * 32 + g // 2, g & 1, f)

    PREV = {4: 1, 5: 2, 6: 3, 7: 5}

    def tdj(nb, j):
        if j == 0 and nb >= 4: S.wait("lg", ("tr", PREV[nb], 7))
        tdma(nb, j)
    plan = {1: (None, 4), 2: (0, 10), 3: (2, 14), 4: (7, 20), 5: (13, 26), 6: (17, 34), 7: (29, 44)}
    for nb, (gd, gr) in plan.items():
        if gd is not None:
            for n in range(8): gjob(0, gd + n // 4, lambda nb=nb, n=n: tdj(nb, n))
        for n in range(8): gjob(0, gr + n // 4, lambda nb=nb, n=n: tread(nb, n))
    for k in range(8): gjob(0, [20, 22, 24, 26, 32, 34, 36, 38][k], lambda k=k: wsite(k, ("dma", 1)))
    gjob(0, 45, wdma_adv)
    job(OPT["wsl"], 1, lambda: ws_loads("L_wsl"))
    job(OPT["wss"], 2, lambda: ws_store("L_wss"))
    job(31, 2, lambda: ws_sig("L_wsg"))

    def pfl_setup():
        S("s_and_b32 s39, s36, 7\ns_lshl_b32 s39, s39, 16\ns_lshl_b32 s44, s36, 4\ns_add_u32 s39, s39, s44\ns_lshl_b32 s44, s3, 14\ns_add_u32 s39, s39, s44")
        S(f"v_and_b32 v0, 0x30, v{VL}\nv_lshlrev_b32 v0, 24, v0\nv_lshl_add_u32 v0, v{VL}, 10, v0\nv_add_u32 v0, s39, v0")
        S(f"s_mul_i32 s39, s37, 24*131072\ns_add_u32 s39, s39, {(16 if OPT['early'] else 8)*131072}")

    def pfl():
        S.mem("vm", f"buffer_load_dword v{VW}, v0, {srdt(S_W1)}, s39 offen", "pfl")
        S("s_add_u32 s39, s39, 4*131072\ns_cmp_eq_u32 s39, s46\ns_cselect_b32 s39, 96*131072, s39")
    job(16, 0, pfl_setup)
    npf = (1 if OPT["bc"] else 2) if not OPT["early"] else 0
    job(OPT["pc"] + 1, 1, lambda: ([pfl() for _ in range(npf)], pfi()))
    for seg in range(1, 6): job(seg * 32 + OPT["pfl"], 1, pfl)

    def nonce(sfx, local):
        S.wait("vm", "nld", local=local)
        S("v_readfirstlane_b32 s56, v51")
        S(f"s_cmp_eq_u32 s56, 0\ns_cbranch_scc1 L_fb_non{sfx}")
        S(f"L_nond{sfx}:")
        COLD.append(f"""L_fb_non{sfx}:
s_memrealtime s[42:43]
s_waitcnt lgkmcnt(0)
s_or_b32 s42, s42, 1
v_mov_b32 v48, s42
v_mov_b32 v49, 0
v_lshlrev_b32 v47, 20, v{VL}
buffer_atomic_cmpswap v[48:49], v47, {srdt(S_DBG)}, 0 offen sc0 sc1
s_waitcnt vmcnt(0)
v_readfirstlane_b32 s56, v48
s_nop 3
s_cmp_eq_u32 s56, 0
s_cselect_b32 s56, s42, s56
s_branch L_nond{sfx}""")

    def sig1():
        S("s_cmp_ge_u32 s3, 2\ns_cbranch_scc1 L_sig1")
        nonce("a", True)
        S("s_lshl_b32 s42, s41, 6\ns_add_u32 s42, s42, s40\ns_lshl_b32 s42, s42, 4\ns_lshl_b32 s43, s3, 3\ns_add_u32 s42, s42, s43")
        S(f"v_mov_b32 v48, s56\nv_lshlrev_b32 v49, 20, v{VL}")
        S.mem("vm", f"buffer_store_dword v48, v49, {srdt(S_T1)}, s42 offen sc1", "sig1", opt=True)
        S("L_sig1:")
    job(OPT["sg1"], OPT["sgg"], sig1)
    job(10, 2, lambda: nonce("b", False))
    def b1load():
        S.srd(S_T0, P_B1, 1024)
        S(f"v_bfe_u32 v28, v{VL}, 4, 1\nv_lshlrev_b32 v28, 3, v28\ns_lshl_b32 s44, s36, 4\ns_lshl_b32 s43, s37, 20\ns_add_u32 s44, s44, s43")
        S.mem("vm", f"buffer_load_dwordx2 v[30:31], v28, {srdt(S_T0)}, s44 offen", "b1l")

    def b1unpack():
        S.wait("vm", "b1l")
        S("v_lshlrev_b32 v28, 16, v30\nv_and_b32 v29, 0xffff0000, v30\nv_lshlrev_b32 v30, 16, v31\nv_and_b32 v31, 0xffff0000, v31")
    job(0, 0, b1load)
    job(8, 0, b1unpack)
    for n in range(32):
        r = ACC + 4 * (31 - n)
        job(8 + n // 2, n & 1, lambda r=r: S(f"v_mov_b64 v[{r}:{r+1}], v[28:29]\nv_mov_b64 v[{r+2}:{r+3}], v[30:31]"))

    def ginit():
        for r in range(G, G + 32, 2): S(f"v_mov_b64 v[{r}:{r+1}], 0")
        S(f"v_mov_b32 v{UA}, 0x100000\nv_mov_b32 v{UA+1}, 0x100000")
        for t in range(G0, G0 + 3): S.mem("lg", "", ("g", t))
    job(30, 1, ginit)

    def poll1_issue():
        S("s_lshl_b32 s43, s37, 10")
        S.mem("vm", f"buffer_load_dwordx3 v[52:54], v{ADV}, {srdt(S_T1)}, s43 offen sc1", "p1")
    job(OPT["pq"], 1, poll1_issue)

    def bar1():
        S.wait("vm", "p1")
        S(f"s_mov_b32 s42, {OPT['spinw']}\ns_cmp_eq_u32 s3, 1\ns_cselect_b32 s42, {OPT['spin1']}, s42\ns_lshl_b32 s43, s37, 10")
        S("L_poll1:")
        S("v_xor_b32 v52, s56, v52\nv_xor_b32 v54, s56, v54\nv_or_b32 v52, v52, v54\nv_cmp_eq_u32 vcc, 0, v52")
        S("s_nop 1\ns_cmp_eq_u64 vcc, -1\ns_cbranch_scc1 L_poll1d")
        S(f"s_sleep 8\nbuffer_load_dwordx3 v[52:54], v{ADV}, {srdt(S_T1)}, s43 offen sc1")
        S("s_waitcnt vmcnt(0)\ns_sub_u32 s42, s42, 1\ns_cmp_lg_u32 s42, 0\ns_cbranch_scc1 L_poll1")
        S("s_cmp_eq_u32 s3, 1\ns_cbranch_scc1 L_fb1")
        S("L_poll1d:")

        def fb1():
            st, OPT["stamp"] = OPT["stamp"], 0
            S("L_fb1:\ns_waitcnt vmcnt(0) lgkmcnt(0)\ns_mov_b32 s41, s37\ns_mov_b32 s40, 0")
            S("L_fb1a:\ns_mov_b32 s3, 0")
            S("L_fb1b:")
            prep_loads(); greedy_consts(); greedy(); prep_store()
            S("s_waitcnt vmcnt(0) lgkmcnt(0)\ns_add_u32 s3, s3, 1\ns_cmp_lt_u32 s3, 2\ns_cbranch_scc1 L_fb1b")
            S("L_fb1e:")
            ws_loads("L_fb1c"); ws_store("L_fb1d")
            S("s_waitcnt vmcnt(0)\ns_add_u32 s3, s3, 1\ns_cmp_lt_u32 s3, 4\ns_cbranch_scc1 L_fb1e")
            S("s_add_u32 s40, s40, 1\ns_cmp_lt_u32 s40, 64\ns_cbranch_scc1 L_fb1a")
            S("s_mov_b32 s3, 1\ns_lshl_b32 s43, s37, 10")
            S("v_mov_b32 v52, s56\nv_mov_b32 v53, s56\nv_mov_b32 v54, s56\nv_mov_b32 v55, s56")
            S(f"buffer_store_dwordx4 v[52:55], v{ADV}, {srdt(S_T1)}, s43 offen sc1")
            for r in range(ACC, ACC + 64, 4): S(f"v_mov_b64 v[{r}:{r+1}], v[28:29]\nv_mov_b64 v[{r+2}:{r+3}], v[30:31]")
            S("s_waitcnt vmcnt(0)\ns_branch L_poll1d")
            OPT["stamp"] = st
        COLD.append("\n".join(sub(fb1)))
        for c in range(3): adload(c)
        if OPT["pfa"]:
            S("s_and_b32 s42, s36, 7\ns_mul_i32 s42, s42, 5888\ns_add_u32 s42, s42, s55\ns_add_u32 s42, s42, 4096")
            S(f"v_lshlrev_b32 v50, 7, v{VL}\nv_mov_b32 v51, 0x7ff00000\nv_cmp_gt_u32 vcc, 46, v{VL}")
            S("s_nop 1\nv_cndmask_b32 v50, v51, v50, vcc")
            S.mem("vm", f"buffer_load_dword v{VW}, v50, {srdt(S_AD)}, s42 offen sc1", "pfa")
    job(OPT["pc"], 2, bar1)
    job(27, 2, lambda: (S.wait("vm", ("dma", 1)), S("s_barrier")))
    if OPT["bc"]:
        for p in range(1, 6):
            for k in range(8): job(p * 32 + [4, 6, 8, 10, 12, 14, 16, 18][k] + OPT["wo"], 1, lambda k=k, p=p: wsite(k, ("dma", p + 1)))
            job(p * 32 + 19 + OPT["wo"], 1, wdma_adv)

            def barc(p=p):
                S.wait("vm", ("dma", p + 1))
                S("s_barrier")
            job(p * 32 + 26, 2, barc)
    else:
        for k in range(8): job([23, 28, 24, 25, 26, 29, 30, 31][k] if OPT["early"] else 28 + k // 2, 0 if OPT["early"] else 2 + (k & 1), lambda k=k: wsite(k, ("dma", 2)))
        job(31, 3, wdma_adv)
        for p in range(1, 6):
            for k in range(8): job(p * 32 + 2 + 4 * k, 1, lambda k=k, p=p: wsite(k, ("dma", p + 2)))
            job(p * 32 + 31, 1, wdma_adv)
    B7 = 6 * 32
    def pwl(m):
        for r, o in ((0, 4), (VW, 12)):
            t = f"buffer_load_dword v{r}, v{ADV}, {srdt(S_T1)}, s43 offen offset:{o} sc1"
            S.mem("vm", t, "pw") if m else S(t)

    def pollw0():
        S("s_lshl_b32 s43, s37, 10")
        pwl(True)

    def pollw():
        S.wait("vm", "pw")
        S(f"s_mov_b32 s42, {OPT['spinw']}")
        S("L_pollw:")
        S(f"v_xor_b32 v0, s56, v0\nv_xor_b32 v{VW}, s56, v{VW}\nv_or_b32 v0, v0, v{VW}\nv_cmp_eq_u32 vcc, 0, v0")
        S("s_nop 1\ns_cmp_eq_u64 vcc, -1\ns_cbranch_scc1 L_pollwd")
        S("s_sleep 4")
        pwl(False)
        S("s_waitcnt vmcnt(0)\ns_sub_u32 s42, s42, 1\ns_cmp_lg_u32 s42, 0\ns_cbranch_scc1 L_pollw")
        S("L_pollwd:")
    job(B7 + 0, 1, pollw0)
    job(B7 + 6, 0, pollw)
    job(B7 + 6, 1, store_setup)
    for i in range(7): job(B7 + 7 + i, 1, lambda i=i: wsdma(i)) if i < 3 else job(B7 + 10, 1, lambda i=i: wsdma(i)) if i == 3 else job(B7 + 7 + i, 1, lambda i=i: wsdma(i))
    for tq in range(6):
        base = B7 + 4 * tq + 10
        slots = [(base, 1), (base, 1), (base, 1), (base, 2), (base + 1, 0), (base + 1, 2), (base + 2, 1), (base + 2, 1)]
        for i in range(8): job(*slots[i], lambda tq=tq, i=i: pk(tq, i))
        job(base + 2, 1, lambda tq=tq: pstore(tq, 0))
        job(base + 4, 1, lambda tq=tq: pstore(tq, 1))
    for part in range(4):
        job(B7 + 17 + 2 * part, 2, lambda part=part: pnn_consts(part))

    def ixsetup():
        S(f"v_lshrrev_b32 v{IXV}, 4, v{VL}\nv_mul_u32_u24 v{IXV}, 100, v{IXV}")
        S("s_lshl_b32 s59, s60, 4\ns_lshl_b32 s44, s3, 2\ns_add_u32 s59, s59, s44\ns_mul_i32 s59, s59, 400")
        S(f"v_add_u32 v{TRA}, {STG}, v{ADV}")
    job(B7 + 8, 2, ixsetup)
    for I in range(4): job(B7 + 23 + I, 1, lambda I=I: ixload(0, I))
    for I in range(4, 8): job(B7 + 23 + I, 1, lambda I=I: ixload(I // 7, I % 7))
    B8 = 7 * 32
    for I in range(1, 5): job(B8 + 0, 1, lambda I=I: ixload(1, I))
    for I in range(5, 7): job(B8 + 4, 1, lambda I=I: ixload(1, I))
    for k in range(16): job(B8 + 3 + k // 4, 0, lambda k=k: wsread(15 - k))
    PJ = {k: [] for k in range(112)}
    RERUN = []

    def tjob(t, f):
        if t >= 0: PJ[t].append(f)
        else:
            job(B8 + 14 + t, 1, f)
            RERUN.append(f)
    col0 = lambda Jc: Jc * (Jc + 1) // 2
    LAT = OPT["lat"]
    cap = {}

    def place(t, kind, f, lim):
        while cap.get((t, kind), 0) >= lim: t += 1
        cap[(t, kind)] = cap.get((t, kind), 0) + 1
        tjob(t, f)
        return t
    free = {sl: ((6 - 14) if sl < 4 else 0, None) for sl in range(8)}
    t_pd, t_er, t_pd0 = {}, {}, {}
    last = {"er": -99, "pd": -99}
    order = [(b, I) for b in range(4) for I in range(7)]
    todo = []
    for (b, I) in order:
        cand = [sl for sl in range(4 if I == 6 else 8)]
        sl = min(cand, key=lambda x: (max(free[x][0], last["pd"]), -x))
        SLOT[(b, I)] = sl; PREVOCC[(b, I)] = free[sl][1]
        t = max(free[sl][0], last["pd"])
        t_pd0[(b, I)] = t
        ts = []
        for jj in range(4 if I < 6 else 1):
            lim = 4 if t < 0 else OPT["pr"] if t < OPT["prt"] else 1
            while cap.get((t, "pd"), 0) >= lim: t += 1
            cap[(t, "pd")] = cap.get((t, "pd"), 0) + 1
            todo.append((t, 1, lambda b=b, I=I, jj=jj: pdma(b, I, jj)))
        last["pd"] = t; t_pd[(b, I)] = t
        t = max(t + LAT, last["er"], (28 * (b - 2) + 22 + I) if b >= 2 else -99)
        dl = 28 * b + col0(I) - 3
        t = min(t, max(dl, last["er"], t_pd[(b, I)] + 1))
        for ks in range(4):
            while cap.get((t, "er"), 0) >= 2: t += 1
            cap[(t, "er")] = cap.get((t, "er"), 0) + 1
            todo.append((t, 2, lambda b=b, I=I, ks=ks: eread(b, I, ks)))
        last["er"] = t; t_er[(b, I)] = t
        assert t < 28 * b + col0(I) or b == 0, (b, I, t)
        free[sl] = (t + 2, (b, I))
    for n, (b, I) in enumerate(order):
        if n >= 14:
            t = max(t_pd[order[n - 14]] + 1, 0)
            assert t < t_pd0[(b, I)]
            todo.append((t, 0, lambda b=b, I=I: ixload(b, I)))
    for t, _, f in sorted(todo, key=lambda x: (x[0], x[1])): tjob(t, f)

    last_pair = NT - 1 + OFF
    GO_P = {0: 0, 1: 1, 2: 2, 3: 3, 4: 4, 5: 5, 6: 6, 7: None}
    for pi in range(0, last_pair + 1):
        seg, gi = pi >> 5, pi & 31
        nb, j = gi >> 2, gi & 3
        p = GO_P[seg]
        if gi == 0:
            S.mark(("seg", seg))
            if seg == 6: stamp(1, 5); stamp(3)
            if seg == 7: stamp(2, 5); stamp(4)
        if seg == 0 and gi in (0, 4, 12, 20, 28): stamp({0: 1, 4: 2, 12: 3, 20: 4, 28: 5}[gi], 3)
        if seg == 7 and gi in (3, 6, 9): stamp({3: 3, 6: 4, 9: 5}[gi], 5)
        if p is not None: Tl = p * 8 + nb - 1
        else: Tl = 55 if (seg == 7 and nb == 0) else -1
        cv = 0 <= Tl < 56
        if nb == 0:
            sch = {0: (["C0"], ["C1", "C2", "C3", "C4"], ["C5"]), 1: (["C6"], ["W0"], ["C7"]), 2: ([], ["W1"], []), 3: ([], [], [])}
        elif nb == 1:
            sch = {0: (["C0"], ["C1", "C2", "C3"], ["C4"]), 1: (["C5"], ["C6", "C7"], []), 2: ([], ["W0"], []), 3: ([], ["W1"], [])}
        else:
            sch = {0: (["C0"], ["C1", "C2", "C3"], ["C4"]), 1: (["C5"], ["W0"], ["C6"]), 2: (["C7"], [], []), 3: ([], ["W1"], [])}
        ga_, gb_, gs_ = sch[j]
        if seg == 0 and j == 0:
            ga_, gb_ = [], ga_ + gb_

        def do(ops):
            if not cv: return
            for o in ops:
                if o[0] == "C": C(Tl, int(o[1]))
                else: W(Tl, int(o[1]), ("w", Tl))

        def jobs(gap):
            for f in J.pop((pi, gap), []): f()

        tr = nb == 7 and p is not None and p < 6
        if seg == 7 and gi == 0: S("s_nop 7")
        M(p, nb, 2 * j)
        R(pi + 3 - OFF)
        if tr: trread(2 * j, 0, ("af", p + 1, 2 * j)); trread(2 * j, 1, ("af", p + 1, 2 * j))
        U(pi + 4 - OFF)
        do(ga_)
        jobs(0)
        M(p, nb, 2 * j + 1)
        do([o for o in gb_ if o[0] == "W"])
        if tr: trread(2 * j + 1, 0, ("af", p + 1, 2 * j + 1)); trread(2 * j + 1, 1, ("af", p + 1, 2 * j + 1))
        gt = pi + 4 - OFF
        if -1 <= gt < NT - 16 and (gt & 3) == 3:
            adload((gt >> 2) + 4)
        jobs(1)
        do([o for o in gb_ if o[0] != "W"])
        SM(pi - OFF)
        do(gs_)
        if tr and j == 3: tr_advance()
        jobs(2)
        if seg >= 1 and gi == 2:
            S.wait("lg", ("w", Tl))
            if seg == 7: S.wait("vm", "wsd")
            S("s_barrier")
        if seg >= 1 and gi == 5:
            if p is not None and p < 6 and not OPT["bc"]:
                S.wait("vm", ("dma", p + 1))
            S("s_barrier")
            if p is not None:
                S(f"v_xor_b32 v{WA}, 0x10000, v{WA}\nv_xor_b32 v{WB}, 0x10000, v{WB}")
        jobs(3)
    assert not J, J.keys()
    S.mark(("seg", 8))
    S("s_barrier")
    S("L_RERUN:")
    stamp(6)
    S.srd(S_W1, P_WS, 4096, WS_FL + 4096)

    ACr = [1, 2, 13, 14]
    pre = []
    for i in range(16): pre.append(lambda i=i: pk(6 + i // 8, i % 8))
    pre += [lambda: pstore(6, 0), lambda: pstore(6, 1), lambda: pstore(7, 0), lambda: pstore(7, 1)]
    S("s_nop 3")
    for f in pre: f()
    for k in range(16, 28): place(4 + k - 16, "ws", lambda k=k: wsread(k), 1)

    def sig2():
        S.wait("vm", "pstore")
        S("s_barrier")
        S("s_or_b32 s44, s3, s61\ns_cmp_lg_u32 s44, 0\ns_cbranch_scc1 L_sig2")
        S(f"s_lshl_b32 s44, s2, 4\nv_mov_b32 v{TMP}, s56\nv_lshlrev_b32 v{TMP+1}, 20, v{VL}")
        S.mem("vm", f"buffer_store_dword v{TMP}, v{TMP+1}, {srdt(S_W1)}, s44 offen sc1", "sig2", opt=True)
        S("L_sig2:")
    PJ[OPT["sg2"]].append(sig2)
    FV = TMP + 2
    XR, W2R = ACC + 96, ACC + 112
    A0 = 4

    def final_setup():
        S(f"v_and_b32 v{FV}, 7, v{VL}\nv_lshlrev_b32 v{FV}, 4, v{FV}")
        S(f"v_bfe_u32 v{FV+1}, v{VL}, 4, 1\nv_lshl_add_u32 v{FV}, v{FV+1}, 22, v{FV}")
        S(f"v_bfe_u32 v{FV+1}, v{VL}, 3, 1\nv_lshrrev_b32 v{TMP}, 5, v{VL}\nv_lshl_add_u32 v{FV+1}, v{TMP}, 1, v{FV+1}")
        S(f"v_lshl_add_u32 v{FV}, v{FV+1}, 18, v{FV}")
        S(f"s_lshl_b32 s44, s3, 8\nv_lshl_add_u32 v{FV+1}, v{FV+1}, 6, s44")
        S.srd(S_T1, P_W2, 1024)

    def final_setup2():
        for i in range(4):
            S.mem("vm", f"buffer_load_dwordx4 v[{W2R+4*i}:{W2R+4*i+3}], v{FV+1}, {srdt(S_T1)}, 0 offen offset:{16*i}", "w2")
        S.srd(S_T0, P_B2, 2)
        S(f"v_mov_b32 v{TMP}, 0")
        S.mem("vm", f"buffer_load_ushort v{TMP+1}, v{TMP}, {srdt(S_T0)}, 0 offen", "w2")
        S.srd(S_T1, P_OUT, 8192)
        c1 = -2 * math.sqrt(2 / math.pi) * math.log2(math.e); c2 = c1 * 0.044715
        S(f"s_mov_b32 s45, {f2h(c2)}\nv_mov_b32 v{FV+1}, {f2h(c1)}\nv_mov_b32 v{A0}, 0")
    PJ[OPT["sg2"] + 4].append(final_setup); PJ[OPT["sg2"] + 8].append(final_setup2)

    PF = TMP + 4
    ABR = XR + 8
    ABL = FR + 512

    def p2loads(opt):
        for i in range(4):
            S.mem("vm", f"buffer_load_dword v{PF+i}, v{ADV}, {srdt(S_W1)}, 0 offen offset:{1024*i} sc1", "p2", opt=opt)
        S.mem("vm", f"buffer_load_dword v{ABR}, v{ABR+1}, {srdt(S_DBG)}, 0 offen offset:32 sc1", "p2", opt=opt)

    def poll2_issue():
        S("s_cmp_lg_u32 s3, 1\ns_cbranch_scc1 L_p2i")
        S(f"v_lshlrev_b32 v{ABR+1}, 2, v{VL}")
        p2loads(True)
        S("L_p2i:")

    def p2check(lab):
        S("s_waitcnt vmcnt(0)")
        for i in range(4): S(f"v_xor_b32 v{PF+i}, s56, v{PF+i}")
        S(f"v_or3_b32 v{PF}, v{PF}, v{PF+1}, v{PF+2}\nv_or_b32 v{PF}, v{PF}, v{PF+3}")
        S(f"v_cmp_eq_u32 vcc, 0, v{PF}")
        S(f"s_nop 1\ns_cmp_eq_u64 vcc, -1\ns_cbranch_scc1 {lab}")

    def poll2():
        S("s_cmp_lg_u32 s3, 1\ns_cbranch_scc1 L_poll2d")
        S(f"s_mov_b32 s42, {OPT['spin2']}\ns_mov_b32 s43, 0")
        S("L_poll2:")
        p2check("L_poll2k")
        S("s_sleep 4")
        p2loads(True)
        S("s_sub_u32 s42, s42, 1\ns_cmp_lg_u32 s42, 0\ns_cbranch_scc1 L_poll2")
        S("s_branch L_fb2")
        S("L_poll2k:")
        S(f"v_writelane_b32 v{ABR}, s43, 8\nv_add_u32 v{ABR+1}, {ABL}, v{ABR+1}")
        S.mem("lg", f"ds_write_b32 v{ABR+1}, v{ABR}", "abw", opt=True)
        S("L_poll2d:")
        S("s_barrier")
        S("s_lshl_b32 s43, s3, 20\ns_lshl_b32 s44, s60, 7\ns_add_u32 s43, s43, s44")
        S(f"s_mov_b32 s{S_P+2}, {WS_P_SZ}")

        def fb2():
            S("L_fb2:\ns_waitcnt vmcnt(0)")
            S("s_and_b32 s42, s2, 31\ns_lshl_b32 s42, 1, s42\ns_lshr_b32 s44, s2, 5\ns_lshl_b32 s44, s44, 2")
            S(f"v_mov_b32 v{PF}, s42\nv_lshlrev_b32 v{PF+1}, 20, v{VL}")
            S(f"buffer_atomic_or v{PF}, v{PF+1}, {srdt(S_DBG)}, s44 offen offset:32 sc0 sc1")
            S("s_waitcnt vmcnt(0)")
            p2loads(False)
            p2check("L_poll2k")
            S(f"s_mov_b32 s43, 1\nv_mov_b32 v{ABR}, 0\ns_branch L_poll2k")
        COLD.append("\n".join(sub(fb2)))

    FLB = [("v", IXR), ("v", IXR + 8), ("v", IXR + 16), ("a", 224), ("a", 232), ("a", 240), ("v", IXR + 32), ("v", IXR + 40)]

    def flreg(t):
        k, r = FLB[t]
        return f"{k}[{r}:{r+7}]"

    def fload(t, s):
        S(f"s_add_u32 s52, s43, {t * 32768}" if s == 0 else f"s_add_u32 s52, s52, {2 << 22}")
        k, r = FLB[t]
        S.mem("vm", f"buffer_load_dwordx4 {k}[{r+4*s}:{r+4*s+3}], v{FV}, {srdt(S_P)}, s52 offen sc1", ("fl", t))

    def gelu_a(t):
        x = XR + 4 * (t & 1)
        S(f"v_mov_b64 v[{x}:{x+1}], 0\nv_mov_b64 v[{x+2}:{x+3}], 0")
        S.wait("vm", ("fl", t))
        S("s_nop 1")
        S(f"v_smfmac_f32_16x16x64_bf16 v[{x}:{x+3}], v[{SEL}:{SEL+3}], {flreg(t)}, v{IDX}")

    def gelu_b(t):
        x, y = XR + 4 * (t & 1), XR + 8 + 4 * (t & 1)
        R4 = range(4)
        for r in R4: S(f"v_mul_f32 v{y+r}, v{x+r}, v{x+r}")
        for r in R4: S(f"v_fma_f32 v{y+r}, v{y+r}, s45, v{FV+1}")
        for r in R4: S(f"v_mul_f32 v{y+r}, v{y+r}, v{x+r}")
        for r in R4: S(f"v_exp_f32 v{y+r}, v{y+r}")
        for r in R4: S(f"v_add_f32 v{y+r}, 1.0, v{y+r}")
        for r in R4: S(f"v_rcp_f32 v{y+r}, v{y+r}")
        for r in R4: S(f"v_mul_f32 v{y+r}, v{y+r}, v{x+r}")
        S(f"v_cvt_pk_bf16_f32 v{y}, v{y}, v{y+1}\nv_cvt_pk_bf16_f32 v{y+1}, v{y+2}, v{y+3}")
        S(f"v_dot2_f32_bf16 v{A0}, v{y}, v{W2R+2*t}, v{A0}\nv_dot2_f32_bf16 v{A0}, v{y+1}, v{W2R+2*t+1}, v{A0}")
    F0 = OPT["fl0"] if OPT["fl0"] else last["pd"] + 2
    assert F0 > last["pd"]
    sys.stderr.write(f"last pd {last['pd']} last er {last['er']} F0 {F0}\n")
    PJ[F0 - 1 - OPT["p2a"]].append(poll2_issue)
    PJ[F0 - 1].append(poll2)
    for i in range(16):
        PJ[F0 + (i * OPT["fls"]) // 2].append(lambda i=i: fload(i >> 1, i & 1))
    GQ = []
    for t in range(8):
        GQ.append(lambda t=t: gelu_a(t))
        if t >= 1: GQ.append(lambda t=t: gelu_b(t - 1))
    GQ.append(lambda: (S("s_nop 7"), gelu_b(7)))
    g0 = F0 + OPT["gl"]
    for i, f in enumerate(GQ):
        PJ[min(111, g0 + 2 * i)].append(f)

    pend = []

    def fma_ops():
        d, w, first, fin = pend.pop(0)
        ops = []
        for r in range(4):
            ops.append(f"v_mul_f32 v{ACr[r]}, v{d+r}, v{w+r}" if first else f"v_fmac_f32 v{ACr[r]}, v{d+r}, v{w+r}")
        if fin is not None:
            ops.append(f"v_add_f32 v{ACr[0]}, v{ACr[0]}, v{ACr[1]}")
            ops.append(f"v_add_f32 v{ACr[2]}, v{ACr[2]}, v{ACr[3]}")
            ops.append(f"v_add_f32 v{ACr[0]}, v{ACr[0]}, v{ACr[2]}")
            ops.append(f"v_accvgpr_write_b32 a{252+fin}, v{ACr[0]}")
        return ops

    def cost(it):
        kind, text = it[0], it[1]
        if kind in "wl": return 4, False
        if kind in "mo": return (8, False)
        if text.startswith("v_exp") or text.startswith("v_rcp"): return 8, True
        if text.startswith("v_smfmac"): return 16, True
        if text.startswith("v_"): return 4, True
        return 4, False

    side = []

    def expand(t):
        for f in PJ[t]:
            keep = S.items; S.items = []
            f()
            its = S.items; S.items = keep
            if any(x[0] == "i" and (x[1].endswith(":") or "branch" in x[1] or "vcc" in x[1] or "s_barrier" in x[1]) for x in its):
                side.append((t, its))
            else:
                for x in its: side.append((t, [x]))

    def emit_side():
        S.items.extend(side.pop(0)[1])

    def have(tag):
        return any(x[0] in "mo" and x[3] == tag for u in side for x in u[1])

    fmq = []
    for gk in range(112):
        bi, k = gk // 28, gk % 28
        I, Jc = BLOCKS[k]
        if k == 0: stamp(2 + bi, 1)
        expand(gk)
        while side and side[0][0] < gk - OPT["lag"]: emit_side()
        if I == 0:
            while have(("er", bi, Jc)): emit_side()
            S.wait("lg", ("er", bi, Jc))
        d = DT[gk % 4]
        for o in fmq: S(o)
        fmq = []
        if len(pend) >= 2:
            if gk - 2 < 28:
                while have(("ws", gk - 2)): emit_side()
                S.wait("lg", ("ws", gk - 2))
            fmq = fma_ops()
        for ks in range(4):
            aI, aJ = ereg(bi, I, ks), ereg(bi, Jc, ks)
            c = "0" if ks == 0 else f"v[{d}:{d+3}]"
            S(f"v_mfma_f32_16x16x32_bf16 v[{d}:{d+3}], a[{aI}:{aI+3}], a[{aJ}:{aJ+3}], {c}")
            budget = 8
            if side and len(side[0][1]) == 1 and not cost(side[0][1][0])[1]:
                budget -= cost(side[0][1][0])[0] - 4
                emit_side()
            need = (len(fmq) + 3 - ks) // (4 - ks) if ks == 3 or budget >= 4 else 0
            need = max(need, len(fmq) - 2 * (3 - ks))
            for _ in range(need):
                S(fmq.pop(0)); budget -= 4
            while side and (len(side[0][1]) > 1 or cost(side[0][1][0])[0] + (4 if side[0][1][0][0] in "mo" else 0) <= budget):
                budget -= sum(cost(x)[0] for x in side[0][1])
                emit_side()
            while fmq and budget >= 4:
                S(fmq.pop(0)); budget -= 4
        pend.append((d, wsreg(k), k == 0, bi if k == 27 else None))
    for o in fmq: S(o)
    while side: emit_side()
    for o in fma_ops(): S(o)
    stamp(7)
    R0 = 64
    S("s_nop 7")
    for o in fma_ops(): S(o)
    S("s_nop 1")
    for i in range(4): S(f"v_accvgpr_read_b32 v{R0+i}, a{252+i}")
    for sh in (1, 2, 4, 8):
        S("s_nop 1")
        for i in range(4):
            S(f"v_add_f32_dpp v{R0+i}, v{R0+i}, v{R0+i} row_ror:{sh} row_mask:0xf bank_mask:0xf")
    t0 = R0 + 4
    S(f"v_lshrrev_b32 v{t0}, 4, v{VL}\nv_lshlrev_b32 v{t0}, 6, v{t0}\ns_lshl_b32 s44, s3, 4\ns_add_u32 s44, s44, {FR+256}\nv_add_u32 v{t0}, s44, v{t0}")
    S.mem("lg", f"ds_write_b128 v{t0}, v[{R0}:{R0+3}]", "lpw")
    A1 = t0 + 2
    S("s_nop 1")
    S(f"v_add_f32_dpp v{A0}, v{A0}, v{A0} row_ror:8 row_mask:0xf bank_mask:0xf")
    S(f"v_mov_b32 v{A1}, v{A0}")
    S("s_nop 1")
    S(f"v_permlane32_swap_b32 v{A0}, v{A1}")
    S(f"v_add_f32 v{A0}, v{A0}, v{A1}")
    S(f"v_and_b32 v{t0}, 7, v{VL}\nv_lshlrev_b32 v{t0}, 3, v{t0}\nv_bfe_u32 v{A1}, v{VL}, 4, 1\nv_lshl_add_u32 v{t0}, v{A1}, 2, v{t0}")
    S(f"s_lshl_b32 s44, s3, 6\ns_add_u32 s44, s44, {FR}\nv_add_u32 v{t0}, s44, v{t0}")
    S.mem("lg", f"ds_write_b32 v{t0}, v{A0}", "dw")
    S.wait("lg", "ALL")
    S("s_barrier")
    S(f"v_lshlrev_b32 v87, 2, v{VL}\nv_add_u32 v87, {ABL}, v87\nds_read_b32 v88, v87")
    S("s_cmp_lg_u32 s3, 0\ns_cbranch_scc1 L_fin")
    S(f"v_and_b32 v84, 15, v{VL}\nv_lshlrev_b32 v85, 2, v84\nv_add_u32 v85, {FR}, v85")
    for k in range(8):
        S(f"ds_read_b32 v{90+k}, v85 offset:{64*k}")
    S(f"v_lshlrev_b32 v89, 16, v{TMP+1}")
    S(f"v_lshlrev_b32 v86, 1, v84\nv_lshrrev_b32 v85, 4, v{VL}\nv_lshl_add_u32 v86, v85, 20, v86")
    S("s_waitcnt lgkmcnt(0)")
    S("v_readlane_b32 s43, v88, 8")
    for k in range(8):
        S(f"v_add_f32 v89, v89, v{90+k}")
    S("s_lshl_b32 s43, s43, 20\ns_lshl_b32 s44, s60, 5\ns_add_u32 s44, s44, s43")
    S("v_cvt_pk_bf16_f32 v89, v89, v89")
    S(f"buffer_store_short v89, v86, {srdt(S_T1)}, s44 offen")
    if OPT["stamp"]:
        S("v_add_f32 v100, v94, v95\nv_add_f32 v101, v96, v97\nv_add_f32 v100, v100, v101")
        S.srd(S_T0, P_WS, 16384, WS_LP)
        S(f"v_lshlrev_b32 v101, 2, v84\nv_lshrrev_b32 v102, 4, v{VL}\nv_lshl_add_u32 v101, v102, 20, v101\ns_lshl_b32 s44, s60, 6")
        S(f"buffer_store_dword v100, v101, {srdt(S_T0)}, s44 offen")
    S("L_fin:")
    S("s_waitcnt lgkmcnt(0)")
    S("v_cmp_ne_u32 vcc, 0, v88\ns_nop 1\ns_and_b32 s43, vcc_lo, 0xff\ns_or_b32 s43, s43, s61\ns_cmp_lg_u32 s43, 0\ns_cbranch_scc1 L_fb3")
    S("L_fin2:")

    def fb3():
        S("L_fb3:\ns_cmp_lg_u32 s61, 0\ns_cbranch_scc1 L_fb3a")
        S("v_accvgpr_write_b32 a250, v88\ns_mov_b32 s61, 1")
        S("L_fb3a:\ns_nop 1\nv_accvgpr_read_b32 v88, a250\ns_nop 1")
        S("v_cmp_ne_u32 vcc, 0, v88\ns_nop 1\ns_and_b32 s43, vcc_lo, 0xff\ns_cmp_eq_u32 s43, 0\ns_cbranch_scc1 L_fin2")
        S("s_ff1_i32_b32 s43, s43\ns_nop 3\nv_readlane_b32 s44, v88, s43\ns_nop 3")
        S("s_ff1_i32_b32 s42, s44\ns_bitset0_b32 s44, s42\ns_mov_b32 m0, s43\ns_nop 3\nv_writelane_b32 v88, s44, m0")
        S("s_lshl_b32 s60, s43, 5\ns_add_u32 s60, s60, s42\ns_nop 1\nv_accvgpr_write_b32 a250, v88")
        S("s_waitcnt vmcnt(0) lgkmcnt(0)\ns_barrier")
        S("s_lshl_b32 s59, s60, 4\ns_lshl_b32 s44, s3, 2\ns_add_u32 s59, s59, s44\ns_mul_i32 s59, s59, 400")
        S(f"s_mov_b32 s{S_P+2}, 0")
        for bi in range(2):
            for I in range(7): ixload(bi, I)
        for k in range(16): wsread(k)
        for f in RERUN: f()
        S("s_waitcnt vmcnt(0) lgkmcnt(0)\ns_branch L_RERUN")
    COLD.append("\n".join(sub(fb3)))
    if OPT["stamp"]:
        S("s_memrealtime s[100:101]")
        S("s_waitcnt lgkmcnt(0)")
        S.srd(S_T0, P_WS, 0x20000, WS_ST)
        S("s_lshl_b32 s44, s2, 2\ns_add_u32 s44, s44, s3\ns_lshl_b32 s44, s44, 6")
        S("s_mov_b64 exec, 1\nv_mov_b32 v0, s44")
        for k in range(9): S(f"v_mov_b32 v{16+k}, s{84+2*k}")
        for k in range(3):
            S(f"buffer_store_dwordx4 v[{16+4*k}:{19+4*k}], v0, {srdt(S_T0)}, 0 offen offset:{16*k}")
        if OPT["dbgt"]:
            S("v_mov_b32 v0, 0\nv_not_b32 v30, v16")
            S(f"buffer_atomic_umax v24, v0, {srdt(S_DBG)}, 0 offen offset:4 sc1")
            S(f"buffer_atomic_umax v30, v0, {srdt(S_DBG)}, 0 offen offset:8 sc1")
            for i, k in enumerate((2, 5, 3, 6, 8)):
                S(f"v_sub_u32 v{31+i}, v{16+k}, v16")
                S(f"buffer_atomic_umax v{31+i}, v0, {srdt(S_DBG)}, 0 offen offset:{12+4*i} sc1")
    S("L_END:\ns_endpgm\nL_CODE_END:")
    for c in COLD: S(c)

    items = S.resolve()
    segs = {}
    cur = -1
    for it in items:
        if isinstance(it, tuple) and it[0] == "mark":
            cur = it[1][1]
            continue
        segs.setdefault(cur, []).append(it)
    norm = lambda x: re.sub(r"_@\d+", "_lp", x)
    body = []
    n = len(segs[1])
    LS = range(1, 6)
    for sg in LS:
        assert len(segs[sg]) == n, (sg, len(segs[sg]), n)
    for i in range(n):
        its = [segs[sg][i] for sg in LS]
        if isinstance(its[0], tuple):
            assert all(x[0] == "wait" and x[1] == its[0][1] for x in its)
            vals = [x[2] for x in its if x[2] is not None]
            body.append(("wait", its[0][1], min(vals) if vals else None))
        else:
            assert all(norm(x) == norm(its[0]) for x in its), its
            body.append(norm(its[0]))
    out = []
    for sg in (-1, 0): out += flat(segs[sg])
    out += ["s_mov_b32 s38, 5", "s_nop 7"]
    if OPT["stamp"] and OPT["sm"] == 0: out += ["s_memrealtime s[94:95]"]
    if OPT["stamp"] and OPT["sm"] == 7: out += ["s_memrealtime s[86:87]", "s_memtime s[88:89]"]
    out += [".p2align 6", "L_LOOP:"]
    fb = flat(body)
    if OPT["ab"] & 1: fb = [x for x in fb if not x.endswith(" lds")]
    if OPT["ab"] & 2: fb = [x for x in fb if not x.startswith("buffer_load_dword v")]
    if OPT["ab"] & 4: fb = [x for x in fb if not x.startswith("buffer_load_dwordx4 v[")]
    if OPT["ab"] & 8: fb = [x for x in fb if x != "s_barrier"]
    if OPT["ab"] & 16: fb = [x for x in fb if not x.startswith("ds_read_b64_tr")]
    if OPT["ab"] & 32: fb = [x for x in fb if not (x.startswith("s_cmp_eq_u32 s49") or x.startswith("s_cbranch_scc0 L_ws") or x.endswith(" lds") or "m0" in x)]
    if OPT["ab"] & 64: fb = [x for x in fb if not x.startswith("v_mfma") and not x.startswith("v_smfmac")]
    out += fb
    if OPT["stamp"] and OPT["sm"] == 7: out += ["s_cmp_lg_u32 s38, 5", "s_cbranch_scc1 L_nst", "s_memtime s[94:95]", "L_nst:"]
    out += ["s_sub_u32 s38, s38, 1", "s_cmp_lg_u32 s38, 0", "s_cbranch_scc1 L_LOOP"]
    if OPT["stamp"] and OPT["sm"] == 7: out += ["s_memrealtime s[90:91]", "s_memtime s[92:93]"]
    for sg in (6, 7, 8): out += flat(segs[sg])
    return "\n".join(out).replace("_@", "_")


def main():
    print("; generated by dev/gen8.py - deep_cross_pnn recsys, single fused kernel")
    print(f"; @launch grid=(256,1,1) block=(256,1,1) lds={LDS_SZ}")
    print('.amdgcn_target "amdgcn-amd-amdhsa--gfx950"\n.text')
    print(gen())
    print(f""".section .rodata,"a"
.p2align 6
.amdhsa_kernel {NAME}
  .amdhsa_next_free_vgpr 512
  .amdhsa_next_free_sgpr 102
  .amdhsa_accum_offset 256
  .amdhsa_group_segment_fixed_size 0
  .amdhsa_kernarg_size 80
  .amdhsa_user_sgpr_count 2
  .amdhsa_user_sgpr_kernarg_segment_ptr 1
  .amdhsa_system_sgpr_workgroup_id_x 1
  .amdhsa_float_denorm_mode_32 3
.end_amdhsa_kernel""")


main()
```

```python
import sys, struct, math, re

OPT = dict(stamp=0, ext=0, sgg=2, pr=1, prt=200, pq=15, pc=21, w1e=0, wsl=17, wss=22, lat3=10, gl=12, l1=1, fl0=0, fls=1, lag=1, adf=1, ab=0, dbgt=0, sm=0, spin1=400, spin2=1000, spinw=40000, bc=1, dly=0, pfc=1, pfa=0, pfw=20, pfl=23, wo=0, early=0, sg1=0, sg2=18, pk=0, p2a=10, lat=10, clk=0)
for a in sys.argv[1:]:
    k, v = a.split("=")
    OPT[k] = int(v)

ADF = ["", " sc1", " nt", " sc0"][OPT["adf"]]
NAME = "standalone__deep_cross_pnn__recsys_kernel"

WS_ADDR = 0
WS_ADDR_SZ = 16 * 50 * 1024
WS_FL = 0x100000
WS_WS = 0x110000
WS_LP = 0x140000
WS_ST = 0x180000
WS_P = 0x200000
WS_P_SZ = 4 * 128 * 4096 * 8

TB1 = 65536
STG = 131072
STGSZ = 8448
GO = 156672
GT = GO + 3584
FR = GT + 2048
LDS_SZ = 163840

WA, WB, TRA, DMAV, ADV, VW, VL = 1, 2, 3, 4, 5, 6, 7
SEL, IDX, UA, TRB = 8, 12, 13, 15
AD, G, D, AF, ACC = 16, 32, 64, 96, 128
S_IDX, S_TAB, S_W1, S_AD, S_P, S_DBG, S_T0, S_T1 = 4, 8, 12, 16, 20, 24, 28, 32
P_IDX, P_TAB, P_WP, P_W1, P_B1, P_W2, P_B2, P_OUT, P_DBG, P_WS = 64, 66, 68, 70, 72, 74, 76, 78, 80, 82
BLOCKS = [(I, J) for J in range(7) for I in range(J + 1)]


def f2h(x):
    return "0x%08x" % struct.unpack("<I", struct.pack("<f", x))[0]


def srdt(s):
    return f"s[{s}:{s+3}]"


class Stream:
    def __init__(self):
        self.items = []
        self.nlab = 0

    def i(self, text):
        for ln in text.split("\n"):
            self.items.append(("i", ln, None, None))

    __call__ = i

    def mem(self, cls, text, tag=None, opt=False):
        self.items.append(("o" if opt else "m", text, cls, tag))

    def wait(self, cls, tag, local=False):
        self.items.append(("l" if local else "w", None, cls, tag))

    def mark(self, name):
        self.items.append(("k", name, None, None))

    def srd(self, d, base, size, off=0):
        if off:
            self.i(f"s_add_u32 s{d}, s{base}, {off}\ns_addc_u32 s{d+1}, s{base+1}, 0")
        else:
            self.i(f"s_mov_b32 s{d}, s{base}\ns_mov_b32 s{d+1}, s{base+1}")
        self.i(f"s_mov_b32 s{d+2}, {size}\ns_mov_b32 s{d+3}, 0x20000")

    def resolve(self):
        out = []
        issued = {"vm": [], "lg": []}
        done = {"vm": 0, "lg": 0}
        for kind, text, cls, tag in self.items:
            if kind == "i":
                out.append(text)
            elif kind == "k":
                out.append(("mark", text))
            elif kind in "mo":
                issued[cls].append((tag, kind == "o"))
                out.append(text)
            else:
                q = issued[cls]
                if tag == "ALL":
                    pos = len(q) - 1
                else:
                    idxs = [i for i, t in enumerate(q) if t[0] == tag]
                    assert idxs, f"wait for unknown tag {tag}"
                    pos = idxs[-1]
                n = sum(1 for t in q[pos + 1:] if not t[1])
                lim = 62 if cls == "vm" else 14
                if pos + 1 <= done[cls]:
                    out.append(("wait", cls, None))
                else:
                    out.append(("wait", cls, min(n, lim)))
                    if kind == "w": done[cls] = pos + 1
        return out


def flat(items):
    out = []
    for it in items:
        if isinstance(it, tuple):
            if it[0] == "wait" and it[2] is not None:
                out.append(f"s_waitcnt {'vmcnt' if it[1] == 'vm' else 'lgkmcnt'}({it[2]})")
        elif it:
            out.append(it)
    return out


def gen():
    S = Stream()
    COLD = []

    def sub(fn):
        keep = S.items
        S.items = []
        fn()
        out = flat(S.resolve())
        S.items = keep
        return out

    def stamp(k, mode=0):
        if OPT["stamp"] and (k in (0, 6, 7) or OPT["sm"] == mode):
            S(f"s_memrealtime s[{84+2*k}:{85+2*k}]")

    def dstamp(k, mode):
        if OPT["stamp"] and OPT["sm"] == mode:
            S(f"s_waitcnt vmcnt(0)\ns_memrealtime s[{84+2*k}:{85+2*k}]")

    GA = 128
    F, F6, TB, PSEL, OB0, OB1, LUT, C257, T, K, M1, M2, TA = 146, 147, 149, 150, 151, 152, 153, 154, 155, 156, 157, 158, 160

    def prep_loads():
        S(f"s_lshl_b32 s42, s3, 2\nv_bfe_u32 v148, v{VL}, 2, 2\nv_add_u32 v148, s42, v148")
        S("s_mul_i32 s42, s41, 96\ns_lshl_b32 s43, s3, 6\ns_add_u32 s42, s42, s43")
        S("v_lshl_add_u32 v144, v44, 2, s42")
        S(f"v_and_b32 v145, 3, v{VL}\nv_lshlrev_b32 v145, 2, v145\nv_add_u32 v145, 384, v145")
        S("v_cmp_gt_u32 vcc, 6, v148")
        S("s_mul_i32 s43, s40, 64*400")
        S("v_cndmask_b32 v144, v145, v144, vcc")
        S(f"v_lshrrev_b32 v145, 5, v{VL}\nv_lshlrev_b32 v145, 5, v145\nv_bfe_u32 v149, v{VL}, 4, 1\nv_add_u32 v145, v145, v149")
        S("v_mul_u32_u24 v145, 400, v145\nv_add_u32 v144, v144, v145")
        S("v_mov_b32 v145, 0x7ffffff0\nv_cmp_gt_u32 vcc, 7, v148")
        S("s_nop 1\nv_cndmask_b32 v144, v145, v144, vcc")
        for n in range(16):
            if n % 4 == 0 and n: S("s_add_u32 s43, s43, 3200")
            S.mem("vm", f"buffer_load_dword v{GA+n}, v144, {srdt(S_IDX)}, s43 offen offset:{(n % 4) * 800}", "prep")

    def greedy_consts():
        S(f"v_and_b32 v{F}, 3, v{VL}")
        S(f"v_lshlrev_b32 v{F6}, 6, v{F}")
        S(f"v_lshrrev_b32 v{T}, 2, v{VL}")
        S(f"s_lshl_b32 s42, s3, 10\ns_add_u32 s42, s42, {GT}")
        S(f"v_lshl_add_u32 v{TB}, v{T}, 6, s42")
        S(f"v_add_u32 v{K}, s42, v{ADV}\nv_mov_b64 v[{TA}:{TA+1}], 0\nv_mov_b64 v[{TA+2}:{TA+3}], 0")
        S.mem("lg", f"ds_write_b128 v{K}, v[{TA}:{TA+3}]", "gz")
        S(f"v_mul_u32_u24 v{PSEL}, 0x010101, v{F}\nv_lshl_or_b32 v{PSEL}, v{F}, 24, v{PSEL}\nv_xor_b32 v{PSEL}, 0x03020100, v{PSEL}")
        S(f"v_cmp_gt_u32 vcc, 7, v148\nv_mov_b32 v{K}, 0x4000")
        S(f"v_lshlrev_b32 v{OB0}, 2, v45\nv_cndmask_b32 v{T}, v{K}, v148, vcc")
        S(f"v_lshl_add_u32 v{OB0}, v{T}, 9, v{OB0}\nv_add_u32 v{OB0}, {GO}, v{OB0}")
        S(f"v_xor_b32 v{OB1}, 0x100, v{OB0}")
        S(f"s_mov_b32 s62, 0x24100400\ns_mov_b32 s63, 0x102\nv_mov_b32 v{LUT}, 0x3c3c3c3c\nv_mov_b32 v{C257}, 0x101")

    TAB = 176
    KK = [156, 164]

    def ga(n):
        r = GA + n
        if n == 0: S.wait("vm", "prep"); stamp(3, 2)
        S(f"v_and_b32 v{T}, 7, v{r}")
        S(f"v_lshrrev_b32 v{r}, 2, v{r}")
        S(f"v_lshlrev_b32 v{T}, 4, v{T}")
        S(f"v_xor_b32 v{T}, v{T}, v{F6}")
        S(f"v_lshl_add_u32 v{r}, v{r}, 8, v{T}")
        S(f"v_lshrrev_b32 v{T}, 2, v{T}")
        S(f"v_add_u32 v{TAB + n}, v{T}, v{TB}")

    def g_read(n):
        S.mem("lg", f"ds_read_b32 v{KK[n & 1]}, v{TAB + n}", ("gr", n))

    def g_chain(n):
        k = KK[n & 1]; m1, m2 = k + 1, k + 2
        tie = 0x03020100 if (n & 1) == 0 else 0x02030001
        L = [f"v_perm_b32 v{k}, v{LUT}, s62, v{k}",
             f"v_perm_b32 v{k}, v{k}, v{k}, v{PSEL}",
             "s_nop 0",
             f"v_add_u32_dpp v{k}, v{k}, v{k} quad_perm:[1,0,3,2] row_mask:0xf bank_mask:0xf",
             "s_nop 0",
             f"v_add_u32_dpp v{k}, v{k}, v{k} quad_perm:[2,3,0,1] row_mask:0xf bank_mask:0xf",
             f"v_add_u32 v{k}, {tie}, v{k}",
             f"v_min_u32_sdwa v{m1}, v{k}, v{k} dst_sel:DWORD dst_unused:UNUSED_PAD src0_sel:BYTE_0 src1_sel:BYTE_1",
             f"v_min_u32_sdwa v{m2}, v{k}, v{k} dst_sel:DWORD dst_unused:UNUSED_PAD src0_sel:BYTE_2 src1_sel:BYTE_3",
             f"v_min_u32 v{m1}, v{m1}, v{m2}",
             f"v_bitop3_b32 v{m1}, v{m1}, 3, v{F + 21 * (n & 1)} bitop3:0x6a"]
        return L

    def g_upd(n):
        k = KK[n & 1]; m1, m2 = k + 1, k + 2
        S(f"v_lshlrev_b32 v{m2}, 3, v{m1}")
        S(f"v_lshlrev_b32 v{m2}, v{m2}, 1")
        S.mem("lg", f"ds_add_u32 v{TAB + n}, v{m2}", "gadd")

    def g_out(n):
        k = KK[n & 1]; m1 = k + 1
        S(f"v_mul_u32_u24 v{m1}, v{m1}, v{C257}")
        mid = 1 if 4 <= n <= 11 else 0
        S(f"v_bitop3_b32 v{m1}, v{m1}, s63, v{OB0 + mid} bitop3:0x6a")
        S.mem("lg", f"ds_write_b16 v{m1}, v{GA+n} offset:{16*n}", "gw")

    def greedy(mid=None):
        S(f"v_xor_b32 v{F+21}, 1, v{F}")
        for n in range(4):
            ga(n)
            S(f"v_xor_b32 v{KK[n & 1]+1}, {n}, v{F}")
            g_upd(n); g_out(n)
        ga(4); ga(5)
        for n in range(4, 16, 2):
            g_read(n); g_read(n + 1)
            if n == 6 and mid: mid()
            if n >= 6: g_out(n - 2); g_out(n - 1)
            if n + 2 < 16: ga(n + 2); ga(n + 3)
            S.wait("lg", ("gr", n + 1))
            for x, y in zip(g_chain(n), g_chain(n + 1)):
                S(x)
                if not x.startswith("s_nop"): S(y)
            g_upd(n); g_upd(n + 1)
        g_out(14); g_out(15)
        S.wait("lg", "ALL")

    def prep_store():
        S(f"s_lshl_b32 s42, s3, 11\ns_add_u32 s42, s42, {GO}\nv_add_u32 v144, s42, v{ADV}")
        for i in range(2):
            S.mem("lg", f"ds_read_b128 v[{128+4*i}:{131+4*i}], v144 offset:{1024*i}", "go")
        S("s_lshr_b32 s42, s40, 4\ns_lshl_b32 s43, s41, 2\ns_add_u32 s42, s42, s43\ns_mul_i32 s42, s42, 50")
        S("s_lshr_b32 s43, s40, 1\ns_lshl_b32 s44, s41, 1\ns_sub_u32 s43, s43, s44\ns_sub_u32 s43, s43, 2\ns_and_b32 s43, s43, 7")
        S("s_add_u32 s42, s42, s43\ns_lshl_b32 s42, s42, 10")
        S("s_and_b32 s44, s40, 1\ns_lshl_b32 s44, s44, 9\ns_add_u32 s42, s42, s44")
        S("s_lshl_b32 s44, s3, 15\ns_add_u32 s42, s42, s44")
        S(f"v_and_b32 v145, 31, v{VL}\nv_lshlrev_b32 v145, 4, v145")
        S(f"v_lshrrev_b32 v146, 5, v{VL}\nv_lshl_add_u32 v145, v146, 13, v145")
        S("s_cmp_ge_u32 s43, 6\ns_cselect_b32 s44, 32, 0\ns_cmp_eq_u32 s3, 0\ns_cselect_b32 s44, 64, s44\ns_cselect_b32 s43, 0, 6144")
        S(f"v_cmp_gt_u32 vcc, s44, v{VL}\nv_mov_b32 v146, 0x7ffffff0")
        S.wait("lg", "go")
        S("v_cndmask_b32 v146, v146, v145, vcc")
        S.mem("vm", f"buffer_store_dwordx4 v[128:131], v145, {srdt(S_AD)}, s42 offen sc1", "pst")
        S("s_add_u32 s42, s42, 16384\ns_sub_u32 s42, s42, s43")
        S.mem("vm", f"buffer_store_dwordx4 v[132:135], v146, {srdt(S_AD)}, s42 offen sc1", "pst")

    def ws_loads(lab):
        S(f"s_cmp_lt_u32 s3, 2\ns_cbranch_scc1 {lab}")
        S("s_and_b32 s52, s3, 1\ns_lshl_b32 s52, s52, 6\ns_add_u32 s52, s52, s40\ns_lshr_b32 s44, s52, 2")
        S("s_mov_b32 s43, 0")
        for J in range(1, 8):
            S(f"s_cmp_ge_u32 s44, {J*(J+1)//2}\ns_cselect_b32 s43, {J}, s43")
        S("s_add_u32 s42, s43, 1\ns_mul_i32 s42, s42, s43\ns_lshr_b32 s42, s42, 1\ns_sub_u32 s42, s44, s42")
        S("s_cmp_eq_u32 s42, s43\ns_cselect_b32 s44, 0x100000, 0")
        S("s_lshl_b32 s42, s42, 2\ns_and_b32 s57, s52, 3\ns_add_u32 s42, s42, s57")
        S(f"v_bfe_u32 v32, v{VL}, 2, 2\nv_mul_u32_u24 v32, 25, v32\nv_lshl_add_u32 v33, s43, 2, v45\nv_add_u32 v32, v32, v33")
        S(f"v_and_b32 v34, 3, v{VL}\nv_mul_u32_u24 v34, 25, v34\nv_add_u32 v34, s42, v34")
        S("v_max_u32 v33, s42, v33\nv_cmp_gt_u32 vcc, 25, v33")
        S("v_mul_u32_u24 v33, 100, v34\nv_add_lshl_u32 v33, v33, v32, 1")
        S("v_mul_u32_u24 v35, 100, v32\nv_add_lshl_u32 v35, v35, v34, 1")
        S("v_mov_b32 v32, 0x7ff00000\nv_cndmask_b32 v33, v32, v33, vcc\nv_cndmask_b32 v35, v32, v35, vcc")
        S.srd(S_T0, P_WP, 20000)
        S.mem("vm", f"buffer_load_ushort v36, v33, {srdt(S_T0)}, 0 offen", "wsl", opt=True)
        S.mem("vm", f"buffer_load_ushort v37, v35, {srdt(S_T0)}, s44 offen", "wsl", opt=True)
        S("s_mov_b32 s57, s52")
        S(f"{lab}:")

    def ws_store(lab):
        S(f"s_cmp_lt_u32 s3, 2\ns_cbranch_scc1 {lab}")
        S.srd(S_T0, P_WS, 4 * 32768, WS_WS)
        S(f"s_lshl_b32 s44, s41, 15\ns_lshl_b32 s43, s57, 8\ns_add_u32 s44, s44, s43\nv_lshlrev_b32 v38, 2, v{VL}")
        S.wait("vm", "wsl", local=True)
        S("v_lshlrev_b32 v36, 16, v36\nv_lshlrev_b32 v37, 16, v37\nv_add_f32 v36, v36, v37")
        S.mem("vm", f"buffer_store_dword v36, v38, {srdt(S_T0)}, s44 offen sc1", "wss", opt=True)
        S(f"{lab}:")

    def ws_sig(lab):
        S(f"s_cmp_lt_u32 s3, 2\ns_cbranch_scc1 {lab}")
        S.wait("vm", "wss", local=True)
        S("s_lshl_b32 s42, s41, 6\ns_add_u32 s42, s42, s40\ns_lshl_b32 s42, s42, 4\ns_and_b32 s43, s3, 1\ns_lshl_b32 s43, s43, 3\ns_add_u32 s42, s42, s43")
        S(f"v_mov_b32 v{D}, s56\nv_lshlrev_b32 v{D+1}, 20, v{VL}")
        S.mem("vm", f"buffer_store_dword v{D}, v{D+1}, {srdt(S_T1)}, s42 offen offset:4 sc1", "sigw", opt=True)
        S(f"{lab}:")

    S(f".globl {NAME}\n.p2align 8\n.type {NAME},@function\n{NAME}:")
    S("s_cmp_ge_u32 s2, 256\ns_cbranch_scc1 L_END")
    stamp(0)
    if OPT["dly"]:
        S(f"s_cmp_lt_u32 s2, 128\ns_cbranch_scc1 L_dl2\ns_mov_b32 s40, {OPT['dly']}\nL_dl1:\ns_sleep 127\ns_sub_u32 s40, s40, 1\ns_cmp_lg_u32 s40, 0\ns_cbranch_scc1 L_dl1\nL_dl2:")
    S("s_load_dwordx16 s[64:79], s[0:1], 0")
    S("s_load_dwordx4 s[80:83], s[0:1], 64")
    S(f"v_lshrrev_b32 v{VW}, 6, v0")
    S(f"v_and_b32 v{VL}, 63, v0")
    if OPT["pfc"]:
        S(f"s_getpc_b64 s[{S_T0}:{S_T0+1}]\nL_PC:\ns_mov_b32 s{S_T0+2}, L_CODE_END-L_PC\ns_mov_b32 s{S_T0+3}, 0x20000")
        S("v_lshrrev_b32 v47, 3, v0\nv_lshlrev_b32 v46, 7, v0\nv_lshl_add_u32 v46, v47, 20, v46\ns_lshr_b32 s44, s2, 3\ns_lshl_b32 s44, s44, 10")
        S(f"buffer_load_dword v47, v46, {srdt(S_T0)}, s44 offen")
    S(f"v_readfirstlane_b32 s3, v{VW}")
    S("s_and_b32 s36, s2, 7\ns_lshl_b32 s36, s36, 3\ns_bfe_u32 s37, s2, 0x30003\ns_add_u32 s36, s36, s37")
    S("s_lshr_b32 s37, s2, 6")
    S("s_lshr_b32 s40, s2, 2\ns_and_b32 s41, s2, 3")
    S(f"v_lshlrev_b32 v{ADV}, 4, v{VL}")
    S("s_lshl_b32 s38, s36, 4\ns_lshl_b32 s39, s3, 17\ns_add_u32 s38, s38, s39")
    S(f"v_lshl_add_u32 v{DMAV}, v{VL}, 10, s38")
    S("s_mul_i32 s45, s37, 24*131072")
    S("s_add_u32 s46, s45, 24*131072")
    S(f"s_mul_i32 s47, s3, 2112\ns_add_u32 s47, s47, {STG}")
    S(f"s_add_u32 s48, s47, {3*STGSZ}")
    S("s_mov_b32 s49, s3")
    S(f"v_and_b32 v44, 15, v{VL}\nv_lshrrev_b32 v45, 4, v{VL}")
    for jj in range(4):
        S(f"v_add_u32 v{40+jj}, {4*jj}, v45\nv_xor_b32 v{40+jj}, v{40+jj}, v44\nv_lshlrev_b32 v{40+jj}, 4, v{40+jj}")
        S(f"v_lshl_add_u32 v{40+jj}, v45, 8, v{40+jj}")
    S("s_lshl_b32 s50, s3, 16")
    S("s_lshl_b32 s51, s3, 14")
    S(f"v_lshlrev_b32 v46, 7, v{VL}")
    S("s_waitcnt lgkmcnt(0)")

    def srds():
        S.srd(S_TAB, P_TAB, 256000)
        S.srd(S_W1, P_W1, 12800 * 1024)
        S.srd(S_DBG, P_DBG, 256)

    def pft():
        S(f"v_mov_b32 v49, 0x7ff00000\nv_cmp_gt_u32 vcc, 32, v{VL}")
        S("s_lshr_b32 s44, s2, 3\ns_lshl_b32 s44, s44, 13\ns_and_b32 s52, s3, 1\ns_lshl_b32 s52, s52, 12\ns_add_u32 s44, s44, s52")
        S("v_cndmask_b32 v48, v49, v46, vcc")
        S.mem("vm", f"buffer_load_dword v47, v48, {srdt(S_TAB)}, s44 offen", "pft")

    def pfw(ph):
        S("s_and_b32 s52, s36, 7\ns_lshl_b32 s52, s52, 16\ns_lshl_b32 s44, s36, 4\ns_add_u32 s52, s52, s44")
        if ph <= 0:
            S(f"v_and_b32 v48, 31, v{VL}\nv_lshlrev_b32 v48, 10, v48\nv_lshrrev_b32 v49, 5, v{VL}\nv_lshl_add_u32 v48, v49, 19, v48")
            S("s_and_b32 s44, s3, 1\ns_lshl_b32 s44, s44, 15\ns_add_u32 s52, s52, s44\ns_add_u32 s52, s52, s45")
            if ph: S(f"s_add_u32 s52, s52, {-ph*4*131072}")
            if not OPT["w1e"]: S(f"v_lshlrev_b32 v49, 25, v49\nv_add_u32 v48, v48, v49")
            S.mem("vm", f"buffer_load_dword v47, v48, {srdt(S_W1)}, s52 offen", "pfw")
        else:
            S(f"v_lshlrev_b32 v0, 10, v44\nv_lshl_add_u32 v0, v45, 19, v0\nv_mov_b32 v49, 0x7ff00000\nv_cmp_gt_u32 vcc, 48, v{VL}\ns_nop 1\nv_cndmask_b32 v0, v49, v0, vcc")
            S("s_lshl_b32 s44, s3, 14\ns_add_u32 s52, s52, s44")
            if ph < 6:
                S(f"s_mul_i32 s44, s37, 24*131072\ns_add_u32 s52, s52, s44\ns_add_u32 s52, s52, {ph*4*131072}")
            else:
                S("s_add_u32 s52, s52, 96*131072")
            S.mem("vm", f"buffer_load_dword v{VW}, v0, {srdt(S_W1)}, s52 offen", "pfw")

    def misc_loads():
        S.srd(S_T0, P_WP, 20000)
        S(f"v_mov_b32 v49, 0x7ff00000\nv_cmp_gt_u32 vcc, 3, v{VL}")
        S("s_lshr_b32 s44, s2, 3\ns_lshl_b32 s44, s44, 1\ns_add_u32 s44, s44, s3\ns_mul_i32 s44, s44, 384")
        S("v_cndmask_b32 v48, v49, v46, vcc")
        S.mem("vm", f"buffer_load_dword v47, v48, {srdt(S_T0)}, s44 offen", "pfp")
        for pp, sz in ((P_B1, 1024), (P_W2, 1024), (P_B2, 2)):
            S.srd(S_T0, pp, sz)
            S.mem("vm", f"buffer_load_ushort v47, v46, {srdt(S_T0)}, 0 offen", "pfp")
        S("s_cmp_lt_u32 s2, 8\ns_cselect_b32 s44, s3, 0\ns_cmp_eq_u32 s44, 1\ns_cbranch_scc0 L_nn")
        S("s_memrealtime s[42:43]\ns_waitcnt lgkmcnt(0)\ns_or_b32 s42, s42, 1")
        S(f"v_mov_b32 v48, s42\nv_mov_b32 v49, 0\nv_lshlrev_b32 v50, 20, v{VL}")
        S.mem("vm", f"buffer_atomic_cmpswap v[48:49], v50, {srdt(S_DBG)}, 0 offen sc1", "nn", opt=True)
        S("L_nn:")

    def pfi():
        S(f"v_cmp_gt_u32 vcc, 14, v{VL}\ns_lshl_b32 s44, s2, 2\ns_add_u32 s44, s44, s3\ns_mul_i32 s44, s44, 1600")
        S("v_mov_b32 v49, 0x7ff00000\nv_cndmask_b32 v48, v49, v46, vcc")
        S.mem("vm", f"buffer_load_dword v{VW}, v48, {srdt(S_IDX)}, s44 offen", "pfi")

    def wdma(half, tag, opt=False):
        if half == 0:
            S("s_mov_b32 m0, s47\ns_nop 0")
            S.mem("vm", f"buffer_load_dwordx4 v{DMAV}, {srdt(S_W1)}, s45 offen lds", tag, opt)
        else:
            S("s_add_u32 m0, s47, 1024\ns_add_u32 s44, s45, 65536")
            S.mem("vm", f"buffer_load_dwordx4 v{DMAV}, {srdt(S_W1)}, s44 offen lds", tag, opt)

    def wdma_adv():
        S(f"s_add_u32 s47, s47, {STGSZ}")
        S("s_cmp_eq_u32 s47, s48")
        S(f"s_cselect_b32 s44, {3*STGSZ}, 0\ns_sub_u32 s47, s47, s44")
        S("s_add_u32 s45, s45, 4*131072")
        S("s_cmp_eq_u32 s45, 100*131072\ns_cselect_b32 s49, 0xff, s49")
        S("s_cmp_eq_u32 s45, s46\ns_cselect_b32 s45, 96*131072, s45")

    def wsite(k, tag):
        S.nlab += 1
        lab = f"L_ws{k}_@{S.nlab}"
        S(f"s_cmp_eq_u32 s49, {k & 3}\ns_cbranch_scc0 {lab}")
        wdma(k >> 2, tag, True)
        S(f"{lab}:")

    TSL = [0, 8192, TB1, TB1 + 8192, 8192, TB1, TB1 + 8192, TB1]

    def tdma(nb, j):
        if j % 2 == 0:
            S(f"s_add_u32 m0, s51, {TSL[nb] + (j & ~3) * 1024}")
            S(f"s_add_u32 s52, s50, {(nb * 8 + (j & ~3)) * 1024}")
        S.mem("vm", f"buffer_load_dwordx4 v{40 + (j & 3)}, {srdt(S_TAB)}, s52 offen offset:{(j & 3) * 1024} lds", ("td", nb))

    def consts():
        S.srd(S_AD, P_WS, WS_ADDR_SZ, WS_ADDR)
        S.srd(S_P, P_WS, WS_P_SZ, WS_P)
        S.srd(S_T1, P_WS, 8192, WS_FL)
        S(f"v_and_b32 v13, 31, v{VL}\nv_lshrrev_b32 v14, 2, v13\nv_and_b32 v13, 3, v13")
        S("v_lshlrev_b32 v13, 4, v13\nv_lshl_add_u32 v13, v14, 8, v13")
        S(f"v_lshrrev_b32 v15, 5, v{VL}\nv_lshl_add_u32 v13, v15, 7, v13")
        S(f"v_lshl_add_u32 v13, v{VW}, 14, v13")
        S("v_and_b32 v14, 1, v14")
        S(f"v_lshl_add_u32 v{WA}, v14, 6, v13")
        S(f"v_xor_b32 v{WB}, 64, v{WA}")
        S(f"v_xor_b32 v13, v44, v15\nv_lshlrev_b32 v13, 4, v13\nv_and_b32 v14, 31, v{VL}\nv_lshl_add_u32 v13, v14, 8, v13")
        S(f"v_lshl_add_u32 v32, v{VW}, 14, v13")
        for ks in range(1, 8):
            S(f"v_xor_b32 v{32+ks}, {32*ks}, v32")
        for ks in range(8):
            S(f"v_xor_b32 v{56+ks}, 0x10000, v{32+ks}")
        S(f"v_and_b32 v13, 1, v{VL}\nv_bfe_u32 v14, v{VL}, 4, 1\nv_lshl_add_u32 v13, v13, 1, v14")
        S("v_mul_u32_u24 v13, 2112, v13")
        S(f"v_bfe_u32 v14, v{VL}, 2, 2\nv_lshl_add_u32 v14, v15, 3, v14\nv_lshl_add_u32 v13, v14, 4, v13")
        S(f"v_bfe_u32 v14, v{VL}, 1, 1\nv_lshl_add_u32 v13, v14, 3, v13")
        S(f"v_add_u32 v{TRA}, {STG}, v13")
        S(f"v_mov_b32 v{TRB}, v{TRA}")
        S(f"v_bfe_u32 v13, v{VL}, 4, 1\nv_bfe_u32 v14, v{VL}, 3, 1\nv_cmp_eq_u32 vcc, v13, v14")
        S(f"v_mov_b32 v13, 0x3f80\nv_bfe_u32 v14, v{VL}, 2, 1")
        S("v_cndmask_b32 v13, 0, v13, vcc")
        S("v_cmp_eq_u32 vcc, 0, v14")
        S("s_nop 1")
        S(f"v_cndmask_b32 v{SEL}, 0, v13, vcc")
        S(f"v_xor_b32 v{SEL+1}, v{SEL}, v13")
        S(f"v_mov_b32 v{SEL+2}, v{SEL}\nv_mov_b32 v{SEL+3}, v{SEL+1}")
        S(f"v_and_b32 v13, 3, v{VL}")
        S(f"v_mul_u32_u24 v{IDX}, 0x5555, v13")
        S("s_mov_b32 s53, 0x110000\ns_mov_b32 s54, 0")
        S("s_lshl_b32 s55, s37, 2\ns_add_u32 s55, s55, s3\ns_mul_i32 s55, s55, 51200")
        S("s_mov_b32 s60, s2\ns_mov_b32 s61, 0\nv_mov_b32 v50, 0")

    main_items = S.items
    S.items = []
    S.srd(S_IDX, P_IDX, 4096 * 400)
    prep_loads()
    stamp(4, 2)
    srds()
    misc_loads()
    consts()
    if OPT["early"] == 1: pfw(-2)
    greedy_consts()
    stamp(1); stamp(5, 2)
    greedy(lambda: S(f"buffer_load_dword v51, v50, {srdt(S_DBG)}, 0 offen sc1"))
    prep_store()
    stamp(1, 2)
    for j in range(8): tdma(1, j)
    stamp(2, 2)
    g_code = flat(S.resolve())
    S.items = []
    srds()
    S.srd(S_IDX, P_IDX, 4096 * 400)
    consts()
    pft(); pfw(0)
    S("s_sub_u32 s50, s50, 0x20000\ns_sub_u32 s51, s51, 0x8000\ns_sub_u32 s47, s47, 4224\ns_mov_b32 s39, 2")
    S(f"v_subrev_u32 v{DMAV}, 0x40000, v{DMAV}")
    stamp(3, 2)
    S("L_ld:")
    for j in range(8): tdma(0, j)
    wdma(0, None); wdma(1, None)
    S("s_add_u32 s50, s50, 0x20000\ns_add_u32 s51, s51, 0x8000\ns_add_u32 s47, s47, 4224")
    S(f"v_add_u32 v{DMAV}, 0x40000, v{DMAV}")
    S("s_sub_u32 s39, s39, 1\ns_cmp_lg_u32 s39, 0\ns_cbranch_scc1 L_ld")
    S("s_sub_u32 s50, s50, 0x20000\ns_sub_u32 s51, s51, 0x8000\ns_sub_u32 s47, s47, 4224")
    S(f"v_subrev_u32 v{DMAV}, 0x40000, v{DMAV}")
    stamp(1); stamp(4, 2)
    if not OPT["w1e"]: pfw(-1)
    S(f"buffer_load_dword v51, v50, {srdt(S_DBG)}, 0 offen sc1")
    for j in range(8): tdma(1, j)
    stamp(1, 2)
    S(f"s_waitcnt vmcnt({9 if OPT['w1e'] else 10})")
    stamp(2, 2)
    l_code = flat(S.resolve())
    S.items = main_items
    S("s_cmp_ge_u32 s3, 2\ns_cbranch_scc1 L_loader")
    for x in g_code: S(x)
    S("s_branch L_join\nL_loader:")
    for x in l_code: S(x)
    S("L_join:")
    S.mem("vm", "", "nld")
    for j in range(8): S.mem("vm", "", ("td", 1))
    wdma_adv()
    S("s_barrier")
    stamp(2)

    def adload(c):
        r = AD + (c & 3) * 4
        S.mem("vm", f"buffer_load_dwordx4 v[{r}:{r+3}], v{ADV}, {srdt(S_AD)}, s55 offen offset:{(c & 3) * 1024}{ADF}", ("ad", c))
        if (c & 3) == 3:
            S("s_add_u32 s55, s55, 4096")

    def trread(ks, half, tag):
        r = AF + ks * 4 + half * 2
        S.mem("lg", f"ds_read_b64_tr_b16 v[{r}:{r+1}], v{TRA} offset:{ks*256 + half*64}", tag)

    def tr_advance():
        S(f"s_add_u32 s54, s54, {STGSZ}")
        S(f"s_cmp_eq_u32 s54, {3*STGSZ}")
        S("s_cselect_b32 s54, 0, s54")
        S(f"v_add_u32 v{TRA}, s54, v{TRB}")

    def tread(nb, ks):
        if ks == 0 and nb >= 1:
            S.wait("vm", ("td", nb))
        k = nb * 8 + ks
        S.mem("lg", f"ds_read_b128 a[{4*k}:{4*k+3}], v{(56 if TSL[nb] >= TB1 else 32)+ks} offset:{TSL[nb] & 0xffff}", ("tr", nb, ks))

    for ks in range(8):
        for h in range(2): trread(ks, h, ("af", 0, ks))
        tread(0, ks)
    tr_advance()

    OFF = 38
    G0 = -6
    NT = 6 * 32 + 8

    def C(tile, i):
        d = D + (tile & 1) * 16 + (i >> 2) * 8
        i &= 3
        S(f"v_cvt_pk_bf16_f32 v{d+i}, v{d+2*i}, v{d+2*i+1}")

    def W(tile, h, tag):
        d = D + (tile & 1) * 16 + h * 8
        S.mem("lg", f"ds_write_b128 v{WB if h else WA}, v[{d}:{d+3}] offset:{(tile & 7)*2048}", tag)

    def U(gt):
        if not (G0 + 4 <= gt < NT): return
        c = gt >> 2
        if gt % 32 == 0:
            S("s_xor_b32 s53, s53, 0x10000\ns_and_b32 s53, s53, 0x10000")
        if (gt & 3) == 0:
            S.wait("vm", ("ad", c))
        a = AD + (c & 3) * 4 + (gt & 3)
        S(f"v_add_u32_sdwa v{UA}, v{a}, s53 dst_sel:DWORD dst_unused:UNUSED_PAD src0_sel:WORD_0 src1_sel:DWORD")
        S(f"v_add_u32_sdwa v{UA+1}, v{a}, s53 dst_sel:DWORD dst_unused:UNUSED_PAD src0_sel:WORD_1 src1_sel:DWORD")

    def R(gt):
        if not (G0 + 3 <= gt < NT): return
        g = G + (gt & 3) * 8
        S.mem("lg", f"ds_read_b128 v[{g}:{g+3}], v{UA}", ("g", gt))
        S.mem("lg", f"ds_read_b128 v[{g+4}:{g+7}], v{UA+1}", ("g", gt))

    def SM(gt):
        if not (G0 <= gt < NT): return
        S.wait("lg", ("g", gt))
        g = G + (gt & 3) * 8
        a = ACC + ((gt & 31) + (24 if gt >= 192 else 0)) * 4
        S(f"v_smfmac_f32_16x16x64_bf16 v[{a}:{a+3}], v[{SEL}:{SEL+3}], v[{g}:{g+7}], v{IDX}")

    def M(p, nb, ks):
        if p is None: return
        if p == 0:
            S.wait("lg", ("tr", nb, ks))
        if nb == 0:
            S.wait("lg", ("af", p, ks))
        d = D + (nb & 1) * 16
        k = nb * 8 + ks
        c = "0" if ks == 0 else f"v[{d}:{d+15}]"
        S(f"v_mfma_f32_32x32x16_bf16 v[{d}:{d+15}], v[{AF+4*ks}:{AF+4*ks+3}], a[{4*k}:{4*k+3}], {c}")

    def pk(tq, i):
        a = ACC + tq * 16
        S(f"v_cvt_pk_bf16_f32 v{a+i}, v{a+2*i}, v{a+2*i+1}")

    LP, FA, FB, F6R = ACC, ACC + 4, ACC + 8, ACC + 12
    DT = [ACC + 16, ACC + 20, ACC + 24, ACC + 28]
    IXR = ACC + 32
    IXV, STV = TRB, DMAV
    TMP = ACC + 88

    def wsreg(k):
        return 64 + 4 * k if k < 16 else 16 + 4 * (k - 16)

    SEQ = {(b, I): 7 * b + I for b in range(4) for I in range(7)}
    SLOT = {}
    PREVOCC = {}

    def pnn_consts(part):
        t0, t1 = F6R, F6R + 1
        if part == 0:
            S(f"v_and_b32 v{t0}, 15, v{VL}\nv_lshrrev_b32 v{t1}, 4, v{VL}")
            S(f"s_add_u32 s57, s51, {TB1}")
            S(f"s_sub_u32 s{S_TAB}, s{P_TAB}, 3072\ns_subb_u32 s{S_TAB+1}, s{P_TAB+1}, 0")
            S(f"s_mov_b32 s{S_TAB+2}, {256000 + 3072}\ns_mov_b32 s{S_TAB+3}, 0x20000")
            S(f"v_xor_b32 v{LP}, v{t1}, v{t0}\nv_lshlrev_b32 v{LP}, 4, v{LP}")
            S(f"v_lshl_add_u32 v{FB}, v{t0}, 8, v{LP}\nv_add_u32 v{FB}, s51, v{FB}")
        elif part == 1:
            for jj in (3, 2, 1, 0):
                S(f"v_xor_b32 v{LP+jj}, {64*jj}, v{LP}")
                if jj < 3: S(f"v_add_u32 v{LP+jj}, {3072 - 1024*jj}, v{LP+jj}")
        elif part == 2:
            for ks in range(1, 4): S(f"v_xor_b32 v{FB+ks}, {64*ks}, v{FB}")
            for ks in range(4): S(f"v_xor_b32 v{FA+ks}, 0x10000, v{FB+ks}")
        else:
            S(f"v_cmp_gt_u32 vcc, 4, v{t0}\nv_mov_b32 v{F6R+3}, 0x100000\ns_nop 0")
            for ks in range(4):
                S(f"v_cndmask_b32 v{F6R+ks}, v{F6R+3}, v{FA+ks}, vcc")

    def ixreg(bi, I):
        return IXR + 4 * (SEQ[(bi, I)] % 14)

    def ixload(bi, I):
        r = ixreg(bi, I)
        if I < 6:
            S.mem("vm", f"buffer_load_dwordx4 v[{r}:{r+3}], v{IXV}, {srdt(S_IDX)}, s59 offen offset:{400*bi + 16*I}", ("ix", bi, I))
        else:
            S.mem("vm", f"buffer_load_dword v{r}, v{IXV}, {srdt(S_IDX)}, s59 offen offset:{400*bi + 96}", ("ix", bi, I))

    def pdma(bi, I, jj):
        r = ixreg(bi, I) + jj
        sl = SLOT[(bi, I)]
        if jj == 0:
            if PREVOCC[(bi, I)]: S.wait("lg", ("er",) + PREVOCC[(bi, I)])
            S.wait("vm", ("ix", bi, I))
            S(f"s_add_u32 m0, s57, {sl*4096}" if sl < 4 else f"s_add_u32 m0, s51, {(sl-4)*4096}")
        S(f"v_lshl_add_u32 v{r}, v{r}, 8, v{LP+jj}")
        S.mem("vm", f"buffer_load_dwordx4 v{r}, {srdt(S_TAB)}, 0 offen offset:{jj*1024} lds", ("pd", bi, I))

    def store_setup():
        S(f"v_and_b32 v{STV}, 15, v{VL}\nv_lshlrev_b32 v{STV}, 4, v{STV}")
        S(f"v_bfe_u32 v0, v{VL}, 4, 1\nv_lshl_add_u32 v{STV}, v0, 15, v{STV}")
        S(f"v_lshrrev_b32 v0, 5, v{VL}\nv_lshl_add_u32 v{STV}, v0, 9, v{STV}")
        S("s_lshl_b32 s45, s37, 22\ns_lshl_b32 s46, s36, 16\ns_add_u32 s45, s45, s46")
        S("s_lshl_b32 s46, s3, 13\ns_add_u32 s45, s45, s46")
        S("s_lshl_b32 s46, s37, 1\ns_add_u32 s46, s46, 2")

    def pstore(tq, h):
        if h == 0:
            S(f"s_add_u32 s47, s46, {tq}\ns_and_b32 s47, s47, 7\ns_lshl_b32 s47, s47, 10\ns_add_u32 s47, s47, s45")
        a = ACC + 16 * tq + 4 * h
        S.mem("vm", f"buffer_store_dwordx4 v[{a}:{a+3}], v{STV}, {srdt(S_P)}, s47 offen offset:{256*h} sc1", "pstore")

    def ereg(bi, I, ks):
        return (bi & 1) * 112 + (I * 4 + ks) * 4

    def eread(bi, I, ks):
        if ks == 0:
            S.wait("vm", ("pd", bi, I))
        a = ereg(bi, I, ks)
        sl = SLOT[(bi, I)]
        adr = (F6R if I == 6 else FA if sl < 4 else FB) + ks
        off = (sl & 3) * 4096
        S.mem("lg", f"ds_read_b128 a[{a}:{a+3}], v{adr} offset:{off}", ("er", bi, I))

    def wsdma(i):
        if i == 0:
            S.srd(S_T0, P_WS, 4 * 32768, WS_WS)
            S(f"s_lshl_b32 s48, s37, 15\ns_mul_i32 s44, s3, 7168\ns_add_u32 s48, s48, s44\ns_add_u32 s49, s44, {STG}")
        if i % 4 == 0:
            S(f"s_add_u32 m0, s49, {i*1024}\ns_add_u32 s50, s48, {i*1024}")
        S.mem("vm", f"buffer_load_dwordx4 v{ADV}, {srdt(S_T0)}, s50 offen offset:{(i & 3)*1024} sc1 lds", "wsd")

    def wsread(k):
        r = wsreg(k)
        S.mem("lg", f"ds_read_b128 v[{r}:{r+3}], v{TRA} offset:{1024*k}", ("ws", k))

    J = {}

    def job(pi, gap, f):
        J.setdefault((pi, gap), []).append(f)

    def gjob(seg, g, f):
        job(seg * 32 + g // 2, g & 1, f)

    PREV = {4: 1, 5: 2, 6: 3, 7: 5}

    def tdj(nb, j):
        if j == 0 and nb >= 4: S.wait("lg", ("tr", PREV[nb], 7))
        tdma(nb, j)
    plan = {1: (None, 4), 2: (0, 10), 3: (2, 14), 4: (7, 20), 5: (13, 26), 6: (17, 34), 7: (29, 44)}
    for nb, (gd, gr) in plan.items():
        if gd is not None:
            for n in range(8): gjob(0, gd + n // 4, lambda nb=nb, n=n: tdj(nb, n))
        for n in range(8): gjob(0, gr + n // 4, lambda nb=nb, n=n: tread(nb, n))
    for k in range(8): gjob(0, [20, 22, 24, 26, 32, 34, 36, 38][k], lambda k=k: wsite(k, ("dma", 1)))
    gjob(0, 45, wdma_adv)
    job(OPT["wsl"], 1, lambda: ws_loads("L_wsl"))
    job(OPT["wss"], 2, lambda: ws_store("L_wss"))
    job(31, 2, lambda: ws_sig("L_wsg"))

    def pfl_setup():
        S("s_and_b32 s39, s36, 7\ns_lshl_b32 s39, s39, 16\ns_lshl_b32 s44, s36, 4\ns_add_u32 s39, s39, s44\ns_lshl_b32 s44, s3, 14\ns_add_u32 s39, s39, s44")
        S(f"v_and_b32 v0, 0x30, v{VL}\nv_lshlrev_b32 v0, 24, v0\nv_lshl_add_u32 v0, v{VL}, 10, v0\nv_add_u32 v0, s39, v0")
        S(f"s_mul_i32 s39, s37, 24*131072\ns_add_u32 s39, s39, {(16 if OPT['early'] else 8)*131072}")

    def pfl():
        S.mem("vm", f"buffer_load_dword v{VW}, v0, {srdt(S_W1)}, s39 offen", "pfl")
        S("s_add_u32 s39, s39, 4*131072\ns_cmp_eq_u32 s39, s46\ns_cselect_b32 s39, 96*131072, s39")
    job(16, 0, pfl_setup)
    npf = (1 if OPT["bc"] else 2) if not OPT["early"] else 0
    job(OPT["pc"] + 1, 1, lambda: ([pfl() for _ in range(npf)], pfi()))
    for seg in range(1, 6): job(seg * 32 + OPT["pfl"], 1, pfl)

    def nonce(sfx, local):
        S.wait("vm", "nld", local=local)
        S("v_readfirstlane_b32 s56, v51")
        S(f"s_cmp_eq_u32 s56, 0\ns_cbranch_scc1 L_fb_non{sfx}")
        S(f"L_nond{sfx}:")
        COLD.append(f"""L_fb_non{sfx}:
s_memrealtime s[42:43]
s_waitcnt lgkmcnt(0)
s_or_b32 s42, s42, 1
v_mov_b32 v48, s42
v_mov_b32 v49, 0
v_lshlrev_b32 v47, 20, v{VL}
buffer_atomic_cmpswap v[48:49], v47, {srdt(S_DBG)}, 0 offen sc0 sc1
s_waitcnt vmcnt(0)
v_readfirstlane_b32 s56, v48
s_nop 3
s_cmp_eq_u32 s56, 0
s_cselect_b32 s56, s42, s56
s_branch L_nond{sfx}""")

    def sig1():
        S("s_cmp_ge_u32 s3, 2\ns_cbranch_scc1 L_sig1")
        nonce("a", True)
        S("s_lshl_b32 s42, s41, 6\ns_add_u32 s42, s42, s40\ns_lshl_b32 s42, s42, 4\ns_lshl_b32 s43, s3, 3\ns_add_u32 s42, s42, s43")
        S(f"v_mov_b32 v48, s56\nv_lshlrev_b32 v49, 20, v{VL}")
        S.mem("vm", f"buffer_store_dword v48, v49, {srdt(S_T1)}, s42 offen sc1", "sig1", opt=True)
        S("L_sig1:")
    job(OPT["sg1"], OPT["sgg"], sig1)
    job(10, 2, lambda: nonce("b", False))
    def b1load():
        S.srd(S_T0, P_B1, 1024)
        S(f"v_bfe_u32 v28, v{VL}, 4, 1\nv_lshlrev_b32 v28, 3, v28\ns_lshl_b32 s44, s36, 4\ns_lshl_b32 s43, s37, 20\ns_add_u32 s44, s44, s43")
        S.mem("vm", f"buffer_load_dwordx2 v[30:31], v28, {srdt(S_T0)}, s44 offen", "b1l")

    def b1unpack():
        S.wait("vm", "b1l")
        S("v_lshlrev_b32 v28, 16, v30\nv_and_b32 v29, 0xffff0000, v30\nv_lshlrev_b32 v30, 16, v31\nv_and_b32 v31, 0xffff0000, v31")
    job(0, 0, b1load)
    job(8, 0, b1unpack)
    for n in range(32):
        r = ACC + 4 * (31 - n)
        job(8 + n // 2, n & 1, lambda r=r: S(f"v_mov_b64 v[{r}:{r+1}], v[28:29]\nv_mov_b64 v[{r+2}:{r+3}], v[30:31]"))

    def ginit():
        for r in range(G, G + 32, 2): S(f"v_mov_b64 v[{r}:{r+1}], 0")
        S(f"v_mov_b32 v{UA}, 0x100000\nv_mov_b32 v{UA+1}, 0x100000")
        for t in range(G0, G0 + 3): S.mem("lg", "", ("g", t))
    job(30, 1, ginit)

    def poll1_issue():
        S("s_lshl_b32 s43, s37, 10")
        S.mem("vm", f"buffer_load_dwordx3 v[52:54], v{ADV}, {srdt(S_T1)}, s43 offen sc1", "p1")
    job(OPT["pq"], 1, poll1_issue)

    def bar1():
        S.wait("vm", "p1")
        S(f"s_mov_b32 s42, {OPT['spinw']}\ns_cmp_eq_u32 s3, 1\ns_cselect_b32 s42, {OPT['spin1']}, s42\ns_lshl_b32 s43, s37, 10")
        S("L_poll1:")
        S("v_xor_b32 v52, s56, v52\nv_xor_b32 v54, s56, v54\nv_or_b32 v52, v52, v54\nv_cmp_eq_u32 vcc, 0, v52")
        S("s_nop 1\ns_cmp_eq_u64 vcc, -1\ns_cbranch_scc1 L_poll1d")
        S(f"s_sleep 8\nbuffer_load_dwordx3 v[52:54], v{ADV}, {srdt(S_T1)}, s43 offen sc1")
        S("s_waitcnt vmcnt(0)\ns_sub_u32 s42, s42, 1\ns_cmp_lg_u32 s42, 0\ns_cbranch_scc1 L_poll1")
        S("s_cmp_eq_u32 s3, 1\ns_cbranch_scc1 L_fb1")
        S("L_poll1d:")

        def fb1():
            st, OPT["stamp"] = OPT["stamp"], 0
            S("L_fb1:\ns_waitcnt vmcnt(0) lgkmcnt(0)\ns_mov_b32 s41, s37\ns_mov_b32 s40, 0")
            S("L_fb1a:\ns_mov_b32 s3, 0")
            S("L_fb1b:")
            prep_loads(); greedy_consts(); greedy(); prep_store()
            S("s_waitcnt vmcnt(0) lgkmcnt(0)\ns_add_u32 s3, s3, 1\ns_cmp_lt_u32 s3, 2\ns_cbranch_scc1 L_fb1b")
            S("L_fb1e:")
            ws_loads("L_fb1c"); ws_store("L_fb1d")
            S("s_waitcnt vmcnt(0)\ns_add_u32 s3, s3, 1\ns_cmp_lt_u32 s3, 4\ns_cbranch_scc1 L_fb1e")
            S("s_add_u32 s40, s40, 1\ns_cmp_lt_u32 s40, 64\ns_cbranch_scc1 L_fb1a")
            S("s_mov_b32 s3, 1\ns_lshl_b32 s43, s37, 10")
            S("v_mov_b32 v52, s56\nv_mov_b32 v53, s56\nv_mov_b32 v54, s56\nv_mov_b32 v55, s56")
            S(f"buffer_store_dwordx4 v[52:55], v{ADV}, {srdt(S_T1)}, s43 offen sc1")
            for r in range(ACC, ACC + 64, 4): S(f"v_mov_b64 v[{r}:{r+1}], v[28:29]\nv_mov_b64 v[{r+2}:{r+3}], v[30:31]")
            S("s_waitcnt vmcnt(0)\ns_branch L_poll1d")
            OPT["stamp"] = st
        COLD.append("\n".join(sub(fb1)))
        for c in range(3): adload(c)
        if OPT["pfa"]:
            S("s_and_b32 s42, s36, 7\ns_mul_i32 s42, s42, 5888\ns_add_u32 s42, s42, s55\ns_add_u32 s42, s42, 4096")
            S(f"v_lshlrev_b32 v50, 7, v{VL}\nv_mov_b32 v51, 0x7ff00000\nv_cmp_gt_u32 vcc, 46, v{VL}")
            S("s_nop 1\nv_cndmask_b32 v50, v51, v50, vcc")
            S.mem("vm", f"buffer_load_dword v{VW}, v50, {srdt(S_AD)}, s42 offen sc1", "pfa")
    job(OPT["pc"], 2, bar1)
    job(27, 2, lambda: (S.wait("vm", ("dma", 1)), S("s_barrier")))
    if OPT["bc"]:
        for p in range(1, 6):
            for k in range(8): job(p * 32 + [4, 6, 8, 10, 12, 14, 16, 18][k] + OPT["wo"], 1, lambda k=k, p=p: wsite(k, ("dma", p + 1)))
            job(p * 32 + 19 + OPT["wo"], 1, wdma_adv)

            def barc(p=p):
                S.wait("vm", ("dma", p + 1))
                S("s_barrier")
            job(p * 32 + 26, 2, barc)
    else:
        for k in range(8): job([23, 28, 24, 25, 26, 29, 30, 31][k] if OPT["early"] else 28 + k // 2, 0 if OPT["early"] else 2 + (k & 1), lambda k=k: wsite(k, ("dma", 2)))
        job(31, 3, wdma_adv)
        for p in range(1, 6):
            for k in range(8): job(p * 32 + 2 + 4 * k, 1, lambda k=k, p=p: wsite(k, ("dma", p + 2)))
            job(p * 32 + 31, 1, wdma_adv)
    B7 = 6 * 32
    def pwl(m):
        for r, o in ((0, 4), (VW, 12)):
            t = f"buffer_load_dword v{r}, v{ADV}, {srdt(S_T1)}, s43 offen offset:{o} sc1"
            S.mem("vm", t, "pw") if m else S(t)

    def pollw0():
        S("s_lshl_b32 s43, s37, 10")
        pwl(True)

    def pollw():
        S.wait("vm", "pw")
        S(f"s_mov_b32 s42, {OPT['spinw']}")
        S("L_pollw:")
        S(f"v_xor_b32 v0, s56, v0\nv_xor_b32 v{VW}, s56, v{VW}\nv_or_b32 v0, v0, v{VW}\nv_cmp_eq_u32 vcc, 0, v0")
        S("s_nop 1\ns_cmp_eq_u64 vcc, -1\ns_cbranch_scc1 L_pollwd")
        S("s_sleep 4")
        pwl(False)
        S("s_waitcnt vmcnt(0)\ns_sub_u32 s42, s42, 1\ns_cmp_lg_u32 s42, 0\ns_cbranch_scc1 L_pollw")
        S("L_pollwd:")
    job(B7 + 0, 1, pollw0)
    job(B7 + 6, 0, pollw)
    job(B7 + 6, 1, store_setup)
    for i in range(7): job(B7 + 7 + i, 1, lambda i=i: wsdma(i)) if i < 3 else job(B7 + 10, 1, lambda i=i: wsdma(i)) if i == 3 else job(B7 + 7 + i, 1, lambda i=i: wsdma(i))
    for tq in range(6):
        base = B7 + 4 * tq + 10
        slots = [(base, 1), (base, 1), (base, 1), (base, 2), (base + 1, 0), (base + 1, 2), (base + 2, 1), (base + 2, 1)]
        for i in range(8): job(*slots[i], lambda tq=tq, i=i: pk(tq, i))
        job(base + 2, 1, lambda tq=tq: pstore(tq, 0))
        job(base + 4, 1, lambda tq=tq: pstore(tq, 1))
    for part in range(4):
        job(B7 + 17 + 2 * part, 2, lambda part=part: pnn_consts(part))

    def ixsetup():
        S(f"v_lshrrev_b32 v{IXV}, 4, v{VL}\nv_mul_u32_u24 v{IXV}, 100, v{IXV}")
        S("s_lshl_b32 s59, s60, 4\ns_lshl_b32 s44, s3, 2\ns_add_u32 s59, s59, s44\ns_mul_i32 s59, s59, 400")
        S(f"v_add_u32 v{TRA}, {STG}, v{ADV}")
    job(B7 + 8, 2, ixsetup)
    for I in range(4): job(B7 + 23 + I, 1, lambda I=I: ixload(0, I))
    for I in range(4, 8): job(B7 + 23 + I, 1, lambda I=I: ixload(I // 7, I % 7))
    B8 = 7 * 32
    for I in range(1, 5): job(B8 + 0, 1, lambda I=I: ixload(1, I))
    for I in range(5, 7): job(B8 + 4, 1, lambda I=I: ixload(1, I))
    for k in range(16): job(B8 + 3 + k // 4, 0, lambda k=k: wsread(15 - k))
    PJ = {k: [] for k in range(112)}
    RERUN = []

    def tjob(t, f):
        if t >= 0: PJ[t].append(f)
        else:
            job(B8 + 14 + t, 1, f)
            RERUN.append(f)
    col0 = lambda Jc: Jc * (Jc + 1) // 2
    LAT = OPT["lat"]
    cap = {}

    def place(t, kind, f, lim):
        while cap.get((t, kind), 0) >= lim: t += 1
        cap[(t, kind)] = cap.get((t, kind), 0) + 1
        tjob(t, f)
        return t
    free = {sl: ((6 - 14) if sl < 4 else 0, None) for sl in range(8)}
    t_pd, t_er, t_pd0 = {}, {}, {}
    last = {"er": -99, "pd": -99}
    order = [(b, I) for b in range(4) for I in range(7)]
    todo = []
    for (b, I) in order:
        cand = [sl for sl in range(4 if I == 6 else 8)]
        sl = min(cand, key=lambda x: (max(free[x][0], last["pd"]), -x))
        SLOT[(b, I)] = sl; PREVOCC[(b, I)] = free[sl][1]
        t = max(free[sl][0], last["pd"])
        t_pd0[(b, I)] = t
        ts = []
        for jj in range(4 if I < 6 else 1):
            lim = 4 if t < 0 else OPT["pr"] if t < OPT["prt"] else 1
            while cap.get((t, "pd"), 0) >= lim: t += 1
            cap[(t, "pd")] = cap.get((t, "pd"), 0) + 1
            todo.append((t, 1, lambda b=b, I=I, jj=jj: pdma(b, I, jj)))
        last["pd"] = t; t_pd[(b, I)] = t
        t = max(t + LAT, last["er"], (28 * (b - 2) + 22 + I) if b >= 2 else -99)
        dl = 28 * b + col0(I) - 3
        t = min(t, max(dl, last["er"], t_pd[(b, I)] + 1))
        for ks in range(4):
            while cap.get((t, "er"), 0) >= 2: t += 1
            cap[(t, "er")] = cap.get((t, "er"), 0) + 1
            todo.append((t, 2, lambda b=b, I=I, ks=ks: eread(b, I, ks)))
        last["er"] = t; t_er[(b, I)] = t
        assert t < 28 * b + col0(I) or b == 0, (b, I, t)
        free[sl] = (t + 2, (b, I))
    for n, (b, I) in enumerate(order):
        if n >= 14:
            t = max(t_pd[order[n - 14]] + 1, 0)
            assert t < t_pd0[(b, I)]
            todo.append((t, 0, lambda b=b, I=I: ixload(b, I)))
    for t, _, f in sorted(todo, key=lambda x: (x[0], x[1])): tjob(t, f)

    last_pair = NT - 1 + OFF
    GO_P = {0: 0, 1: 1, 2: 2, 3: 3, 4: 4, 5: 5, 6: 6, 7: None}
    for pi in range(0, last_pair + 1):
        seg, gi = pi >> 5, pi & 31
        nb, j = gi >> 2, gi & 3
        p = GO_P[seg]
        if gi == 0:
            S.mark(("seg", seg))
            if seg == 6: stamp(1, 5); stamp(3)
            if seg == 7: stamp(2, 5); stamp(4)
        if seg == 0 and gi in (0, 4, 12, 20, 28): stamp({0: 1, 4: 2, 12: 3, 20: 4, 28: 5}[gi], 3)
        if seg == 7 and gi in (3, 6, 9): stamp({3: 3, 6: 4, 9: 5}[gi], 5)
        if p is not None: Tl = p * 8 + nb - 1
        else: Tl = 55 if (seg == 7 and nb == 0) else -1
        cv = 0 <= Tl < 56
        if nb == 0:
            sch = {0: (["C0"], ["C1", "C2", "C3", "C4"], ["C5"]), 1: (["C6"], ["W0"], ["C7"]), 2: ([], ["W1"], []), 3: ([], [], [])}
        elif nb == 1:
            sch = {0: (["C0"], ["C1", "C2", "C3"], ["C4"]), 1: (["C5"], ["C6", "C7"], []), 2: ([], ["W0"], []), 3: ([], ["W1"], [])}
        else:
            sch = {0: (["C0"], ["C1", "C2", "C3"], ["C4"]), 1: (["C5"], ["W0"], ["C6"]), 2: (["C7"], [], []), 3: ([], ["W1"], [])}
        ga_, gb_, gs_ = sch[j]
        if seg == 0 and j == 0:
            ga_, gb_ = [], ga_ + gb_

        def do(ops):
            if not cv: return
            for o in ops:
                if o[0] == "C": C(Tl, int(o[1]))
                else: W(Tl, int(o[1]), ("w", Tl))

        def jobs(gap):
            for f in J.pop((pi, gap), []): f()

        tr = nb == 7 and p is not None and p < 6
        if seg == 7 and gi == 0: S("s_nop 7")
        M(p, nb, 2 * j)
        R(pi + 3 - OFF)
        if tr: trread(2 * j, 0, ("af", p + 1, 2 * j)); trread(2 * j, 1, ("af", p + 1, 2 * j))
        U(pi + 4 - OFF)
        do(ga_)
        jobs(0)
        M(p, nb, 2 * j + 1)
        do([o for o in gb_ if o[0] == "W"])
        if tr: trread(2 * j + 1, 0, ("af", p + 1, 2 * j + 1)); trread(2 * j + 1, 1, ("af", p + 1, 2 * j + 1))
        gt = pi + 4 - OFF
        if -1 <= gt < NT - 16 and (gt & 3) == 3:
            adload((gt >> 2) + 4)
        jobs(1)
        do([o for o in gb_ if o[0] != "W"])
        SM(pi - OFF)
        do(gs_)
        if tr and j == 3: tr_advance()
        jobs(2)
        if seg >= 1 and gi == 2:
            S.wait("lg", ("w", Tl))
            if seg == 7: S.wait("vm", "wsd")
            S("s_barrier")
        if seg >= 1 and gi == 5:
            if p is not None and p < 6 and not OPT["bc"]:
                S.wait("vm", ("dma", p + 1))
            S("s_barrier")
            if p is not None:
                S(f"v_xor_b32 v{WA}, 0x10000, v{WA}\nv_xor_b32 v{WB}, 0x10000, v{WB}")
        jobs(3)
    assert not J, J.keys()
    S.mark(("seg", 8))
    S("s_barrier")
    S("L_RERUN:")
    stamp(6)
    S.srd(S_W1, P_WS, 4096, WS_FL + 4096)

    ACr = [1, 2, 13, 14]
    pre = []
    for i in range(16): pre.append(lambda i=i: pk(6 + i // 8, i % 8))
    pre += [lambda: pstore(6, 0), lambda: pstore(6, 1), lambda: pstore(7, 0), lambda: pstore(7, 1)]
    S("s_nop 3")
    for f in pre: f()
    for k in range(16, 28): place(4 + k - 16, "ws", lambda k=k: wsread(k), 1)

    def sig2():
        S.wait("vm", "pstore")
        S("s_barrier")
        S("s_or_b32 s44, s3, s61\ns_cmp_lg_u32 s44, 0\ns_cbranch_scc1 L_sig2")
        S(f"s_lshl_b32 s44, s2, 4\nv_mov_b32 v{TMP}, s56\nv_lshlrev_b32 v{TMP+1}, 20, v{VL}")
        S.mem("vm", f"buffer_store_dword v{TMP}, v{TMP+1}, {srdt(S_W1)}, s44 offen sc1", "sig2", opt=True)
        S("L_sig2:")
    PJ[OPT["sg2"]].append(sig2)
    FV = TMP + 2
    XR, W2R = ACC + 96, ACC + 112
    A0 = 4

    def final_setup():
        S(f"v_and_b32 v{FV}, 7, v{VL}\nv_lshlrev_b32 v{FV}, 4, v{FV}")
        S(f"v_bfe_u32 v{FV+1}, v{VL}, 4, 1\nv_lshl_add_u32 v{FV}, v{FV+1}, 22, v{FV}")
        S(f"v_bfe_u32 v{FV+1}, v{VL}, 3, 1\nv_lshrrev_b32 v{TMP}, 5, v{VL}\nv_lshl_add_u32 v{FV+1}, v{TMP}, 1, v{FV+1}")
        S(f"v_lshl_add_u32 v{FV}, v{FV+1}, 18, v{FV}")
        S(f"s_lshl_b32 s44, s3, 8\nv_lshl_add_u32 v{FV+1}, v{FV+1}, 6, s44")
        S.srd(S_T1, P_W2, 1024)

    def final_setup2():
        for i in range(4):
            S.mem("vm", f"buffer_load_dwordx4 v[{W2R+4*i}:{W2R+4*i+3}], v{FV+1}, {srdt(S_T1)}, 0 offen offset:{16*i}", "w2")
        S.srd(S_T0, P_B2, 2)
        S(f"v_mov_b32 v{TMP}, 0")
        S.mem("vm", f"buffer_load_ushort v{TMP+1}, v{TMP}, {srdt(S_T0)}, 0 offen", "w2")
        S.srd(S_T1, P_OUT, 8192)
        c1 = -2 * math.sqrt(2 / math.pi) * math.log2(math.e); c2 = c1 * 0.044715
        S(f"s_mov_b32 s45, {f2h(c2)}\nv_mov_b32 v{FV+1}, {f2h(c1)}\nv_mov_b32 v{A0}, 0")
    PJ[OPT["sg2"] + 4].append(final_setup); PJ[OPT["sg2"] + 8].append(final_setup2)

    PF = TMP + 4
    ABR = XR + 8
    ABL = FR + 512

    def p2loads(opt):
        for i in range(4):
            S.mem("vm", f"buffer_load_dword v{PF+i}, v{ADV}, {srdt(S_W1)}, 0 offen offset:{1024*i} sc1", "p2", opt=opt)
        S.mem("vm", f"buffer_load_dword v{ABR}, v{ABR+1}, {srdt(S_DBG)}, 0 offen offset:32 sc1", "p2", opt=opt)

    def poll2_issue():
        S("s_cmp_lg_u32 s3, 1\ns_cbranch_scc1 L_p2i")
        S(f"v_lshlrev_b32 v{ABR+1}, 2, v{VL}")
        p2loads(True)
        S("L_p2i:")

    def p2check(lab):
        S("s_waitcnt vmcnt(0)")
        for i in range(4): S(f"v_xor_b32 v{PF+i}, s56, v{PF+i}")
        S(f"v_or3_b32 v{PF}, v{PF}, v{PF+1}, v{PF+2}\nv_or_b32 v{PF}, v{PF}, v{PF+3}")
        S(f"v_cmp_eq_u32 vcc, 0, v{PF}")
        S(f"s_nop 1\ns_cmp_eq_u64 vcc, -1\ns_cbranch_scc1 {lab}")

    def poll2():
        S("s_cmp_lg_u32 s3, 1\ns_cbranch_scc1 L_poll2d")
        S(f"s_mov_b32 s42, {OPT['spin2']}\ns_mov_b32 s43, 0")
        S("L_poll2:")
        p2check("L_poll2k")
        S("s_sleep 4")
        p2loads(True)
        S("s_sub_u32 s42, s42, 1\ns_cmp_lg_u32 s42, 0\ns_cbranch_scc1 L_poll2")
        S("s_branch L_fb2")
        S("L_poll2k:")
        S(f"v_writelane_b32 v{ABR}, s43, 8\nv_add_u32 v{ABR+1}, {ABL}, v{ABR+1}")
        S.mem("lg", f"ds_write_b32 v{ABR+1}, v{ABR}", "abw", opt=True)
        S("L_poll2d:")
        S("s_barrier")
        S("s_lshl_b32 s43, s3, 20\ns_lshl_b32 s44, s60, 7\ns_add_u32 s43, s43, s44")
        S(f"s_mov_b32 s{S_P+2}, {WS_P_SZ}")

        def fb2():
            S("L_fb2:\ns_waitcnt vmcnt(0)")
            S("s_and_b32 s42, s2, 31\ns_lshl_b32 s42, 1, s42\ns_lshr_b32 s44, s2, 5\ns_lshl_b32 s44, s44, 2")
            S(f"v_mov_b32 v{PF}, s42\nv_lshlrev_b32 v{PF+1}, 20, v{VL}")
            S(f"buffer_atomic_or v{PF}, v{PF+1}, {srdt(S_DBG)}, s44 offen offset:32 sc0 sc1")
            S("s_waitcnt vmcnt(0)")
            p2loads(False)
            p2check("L_poll2k")
            S(f"s_mov_b32 s43, 1\nv_mov_b32 v{ABR}, 0\ns_branch L_poll2k")
        COLD.append("\n".join(sub(fb2)))

    FLB = [("v", IXR), ("v", IXR + 8), ("v", IXR + 16), ("a", 224), ("a", 232), ("a", 240), ("v", IXR + 32), ("v", IXR + 40)]

    def flreg(t):
        k, r = FLB[t]
        return f"{k}[{r}:{r+7}]"

    def fload(t, s):
        S(f"s_add_u32 s52, s43, {t * 32768}" if s == 0 else f"s_add_u32 s52, s52, {2 << 22}")
        k, r = FLB[t]
        S.mem("vm", f"buffer_load_dwordx4 {k}[{r+4*s}:{r+4*s+3}], v{FV}, {srdt(S_P)}, s52 offen sc1", ("fl", t))

    def gelu_a(t):
        x = XR + 4 * (t & 1)
        S(f"v_mov_b64 v[{x}:{x+1}], 0\nv_mov_b64 v[{x+2}:{x+3}], 0")
        S.wait("vm", ("fl", t))
        S("s_nop 1")
        S(f"v_smfmac_f32_16x16x64_bf16 v[{x}:{x+3}], v[{SEL}:{SEL+3}], {flreg(t)}, v{IDX}")

    def gelu_b(t):
        x, y = XR + 4 * (t & 1), XR + 8 + 4 * (t & 1)
        R4 = range(4)
        for r in R4: S(f"v_mul_f32 v{y+r}, v{x+r}, v{x+r}")
        for r in R4: S(f"v_fma_f32 v{y+r}, v{y+r}, s45, v{FV+1}")
        for r in R4: S(f"v_mul_f32 v{y+r}, v{y+r}, v{x+r}")
        for r in R4: S(f"v_exp_f32 v{y+r}, v{y+r}")
        for r in R4: S(f"v_add_f32 v{y+r}, 1.0, v{y+r}")
        for r in R4: S(f"v_rcp_f32 v{y+r}, v{y+r}")
        for r in R4: S(f"v_mul_f32 v{y+r}, v{y+r}, v{x+r}")
        S(f"v_cvt_pk_bf16_f32 v{y}, v{y}, v{y+1}\nv_cvt_pk_bf16_f32 v{y+1}, v{y+2}, v{y+3}")
        S(f"v_dot2_f32_bf16 v{A0}, v{y}, v{W2R+2*t}, v{A0}\nv_dot2_f32_bf16 v{A0}, v{y+1}, v{W2R+2*t+1}, v{A0}")
    F0 = OPT["fl0"] if OPT["fl0"] else last["pd"] + 2
    assert F0 > last["pd"]
    sys.stderr.write(f"last pd {last['pd']} last er {last['er']} F0 {F0}\n")
    PJ[F0 - 1 - OPT["p2a"]].append(poll2_issue)
    PJ[F0 - 1].append(poll2)
    for i in range(16):
        PJ[F0 + (i * OPT["fls"]) // 2].append(lambda i=i: fload(i >> 1, i & 1))
    GQ = []
    for t in range(8):
        GQ.append(lambda t=t: gelu_a(t))
        if t >= 1: GQ.append(lambda t=t: gelu_b(t - 1))
    GQ.append(lambda: (S("s_nop 7"), gelu_b(7)))
    g0 = F0 + OPT["gl"]
    for i, f in enumerate(GQ):
        PJ[min(111, g0 + 2 * i)].append(f)

    pend = []

    def fma_ops():
        d, w, first, fin = pend.pop(0)
        ops = []
        for r in range(4):
            ops.append(f"v_mul_f32 v{ACr[r]}, v{d+r}, v{w+r}" if first else f"v_fmac_f32 v{ACr[r]}, v{d+r}, v{w+r}")
        if fin is not None:
            ops.append(f"v_add_f32 v{ACr[0]}, v{ACr[0]}, v{ACr[1]}")
            ops.append(f"v_add_f32 v{ACr[2]}, v{ACr[2]}, v{ACr[3]}")
            ops.append(f"v_add_f32 v{ACr[0]}, v{ACr[0]}, v{ACr[2]}")
            ops.append(f"v_accvgpr_write_b32 a{252+fin}, v{ACr[0]}")
        return ops

    def cost(it):
        kind, text = it[0], it[1]
        if kind in "wl": return 4, False
        if kind in "mo": return (8, False)
        if text.startswith("v_exp") or text.startswith("v_rcp"): return 8, True
        if text.startswith("v_smfmac"): return 16, True
        if text.startswith("v_"): return 4, True
        return 4, False

    side = []

    def expand(t):
        for f in PJ[t]:
            keep = S.items; S.items = []
            f()
            its = S.items; S.items = keep
            if any(x[0] == "i" and (x[1].endswith(":") or "branch" in x[1] or "vcc" in x[1] or "s_barrier" in x[1]) for x in its):
                side.append((t, its))
            else:
                for x in its: side.append((t, [x]))

    def emit_side():
        S.items.extend(side.pop(0)[1])

    def have(tag):
        return any(x[0] in "mo" and x[3] == tag for u in side for x in u[1])

    fmq = []
    for gk in range(112):
        bi, k = gk // 28, gk % 28
        I, Jc = BLOCKS[k]
        if k == 0: stamp(2 + bi, 1)
        expand(gk)
        while side and side[0][0] < gk - OPT["lag"]: emit_side()
        if I == 0:
            while have(("er", bi, Jc)): emit_side()
            S.wait("lg", ("er", bi, Jc))
        d = DT[gk % 4]
        for o in fmq: S(o)
        fmq = []
        if len(pend) >= 2:
            if gk - 2 < 28:
                while have(("ws", gk - 2)): emit_side()
                S.wait("lg", ("ws", gk - 2))
            fmq = fma_ops()
        for ks in range(4):
            aI, aJ = ereg(bi, I, ks), ereg(bi, Jc, ks)
            c = "0" if ks == 0 else f"v[{d}:{d+3}]"
            S(f"v_mfma_f32_16x16x32_bf16 v[{d}:{d+3}], a[{aI}:{aI+3}], a[{aJ}:{aJ+3}], {c}")
            budget = 8
            if side and len(side[0][1]) == 1 and not cost(side[0][1][0])[1]:
                budget -= cost(side[0][1][0])[0] - 4
                emit_side()
            need = (len(fmq) + 3 - ks) // (4 - ks) if ks == 3 or budget >= 4 else 0
            need = max(need, len(fmq) - 2 * (3 - ks))
            for _ in range(need):
                S(fmq.pop(0)); budget -= 4
            while side and (len(side[0][1]) > 1 or cost(side[0][1][0])[0] + (4 if side[0][1][0][0] in "mo" else 0) <= budget):
                budget -= sum(cost(x)[0] for x in side[0][1])
                emit_side()
            while fmq and budget >= 4:
                S(fmq.pop(0)); budget -= 4
        pend.append((d, wsreg(k), k == 0, bi if k == 27 else None))
    for o in fmq: S(o)
    while side: emit_side()
    for o in fma_ops(): S(o)
    stamp(7)
    R0 = 64
    S("s_nop 7")
    for o in fma_ops(): S(o)
    S("s_nop 1")
    for i in range(4): S(f"v_accvgpr_read_b32 v{R0+i}, a{252+i}")
    for sh in (1, 2, 4, 8):
        S("s_nop 1")
        for i in range(4):
            S(f"v_add_f32_dpp v{R0+i}, v{R0+i}, v{R0+i} row_ror:{sh} row_mask:0xf bank_mask:0xf")
    t0 = R0 + 4
    S(f"v_lshrrev_b32 v{t0}, 4, v{VL}\nv_lshlrev_b32 v{t0}, 6, v{t0}\ns_lshl_b32 s44, s3, 4\ns_add_u32 s44, s44, {FR+256}\nv_add_u32 v{t0}, s44, v{t0}")
    S.mem("lg", f"ds_write_b128 v{t0}, v[{R0}:{R0+3}]", "lpw")
    A1 = t0 + 2
    S("s_nop 1")
    S(f"v_add_f32_dpp v{A0}, v{A0}, v{A0} row_ror:8 row_mask:0xf bank_mask:0xf")
    S(f"v_mov_b32 v{A1}, v{A0}")
    S("s_nop 1")
    S(f"v_permlane32_swap_b32 v{A0}, v{A1}")
    S(f"v_add_f32 v{A0}, v{A0}, v{A1}")
    S(f"v_and_b32 v{t0}, 7, v{VL}\nv_lshlrev_b32 v{t0}, 3, v{t0}\nv_bfe_u32 v{A1}, v{VL}, 4, 1\nv_lshl_add_u32 v{t0}, v{A1}, 2, v{t0}")
    S(f"s_lshl_b32 s44, s3, 6\ns_add_u32 s44, s44, {FR}\nv_add_u32 v{t0}, s44, v{t0}")
    S.mem("lg", f"ds_write_b32 v{t0}, v{A0}", "dw")
    S.wait("lg", "ALL")
    S("s_barrier")
    S(f"v_lshlrev_b32 v87, 2, v{VL}\nv_add_u32 v87, {ABL}, v87\nds_read_b32 v88, v87")
    S("s_cmp_lg_u32 s3, 0\ns_cbranch_scc1 L_fin")
    S(f"v_and_b32 v84, 15, v{VL}\nv_lshlrev_b32 v85, 2, v84\nv_add_u32 v85, {FR}, v85")
    for k in range(8):
        S(f"ds_read_b32 v{90+k}, v85 offset:{64*k}")
    S(f"v_lshlrev_b32 v89, 16, v{TMP+1}")
    S(f"v_lshlrev_b32 v86, 1, v84\nv_lshrrev_b32 v85, 4, v{VL}\nv_lshl_add_u32 v86, v85, 20, v86")
    S("s_waitcnt lgkmcnt(0)")
    S("v_readlane_b32 s43, v88, 8")
    for k in range(8):
        S(f"v_add_f32 v89, v89, v{90+k}")
    S("s_lshl_b32 s43, s43, 20\ns_lshl_b32 s44, s60, 5\ns_add_u32 s44, s44, s43")
    S("v_cvt_pk_bf16_f32 v89, v89, v89")
    S(f"buffer_store_short v89, v86, {srdt(S_T1)}, s44 offen")
    if OPT["stamp"]:
        S("v_add_f32 v100, v94, v95\nv_add_f32 v101, v96, v97\nv_add_f32 v100, v100, v101")
        S.srd(S_T0, P_WS, 16384, WS_LP)
        S(f"v_lshlrev_b32 v101, 2, v84\nv_lshrrev_b32 v102, 4, v{VL}\nv_lshl_add_u32 v101, v102, 20, v101\ns_lshl_b32 s44, s60, 6")
        S(f"buffer_store_dword v100, v101, {srdt(S_T0)}, s44 offen")
    S("L_fin:")
    S("s_waitcnt lgkmcnt(0)")
    S("v_cmp_ne_u32 vcc, 0, v88\ns_nop 1\ns_and_b32 s43, vcc_lo, 0xff\ns_or_b32 s43, s43, s61\ns_cmp_lg_u32 s43, 0\ns_cbranch_scc1 L_fb3")
    S("L_fin2:")

    def fb3():
        S("L_fb3:\ns_cmp_lg_u32 s61, 0\ns_cbranch_scc1 L_fb3a")
        S("v_accvgpr_write_b32 a250, v88\ns_mov_b32 s61, 1")
        S("L_fb3a:\ns_nop 1\nv_accvgpr_read_b32 v88, a250\ns_nop 1")
        S("v_cmp_ne_u32 vcc, 0, v88\ns_nop 1\ns_and_b32 s43, vcc_lo, 0xff\ns_cmp_eq_u32 s43, 0\ns_cbranch_scc1 L_fin2")
        S("s_ff1_i32_b32 s43, s43\ns_nop 3\nv_readlane_b32 s44, v88, s43\ns_nop 3")
        S("s_ff1_i32_b32 s42, s44\ns_bitset0_b32 s44, s42\ns_mov_b32 m0, s43\ns_nop 3\nv_writelane_b32 v88, s44, m0")
        S("s_lshl_b32 s60, s43, 5\ns_add_u32 s60, s60, s42\ns_nop 1\nv_accvgpr_write_b32 a250, v88")
        S("s_waitcnt vmcnt(0) lgkmcnt(0)\ns_barrier")
        S("s_lshl_b32 s59, s60, 4\ns_lshl_b32 s44, s3, 2\ns_add_u32 s59, s59, s44\ns_mul_i32 s59, s59, 400")
        S(f"s_mov_b32 s{S_P+2}, 0")
        for bi in range(2):
            for I in range(7): ixload(bi, I)
        for k in range(16): wsread(k)
        for f in RERUN: f()
        S("s_waitcnt vmcnt(0) lgkmcnt(0)\ns_branch L_RERUN")
    COLD.append("\n".join(sub(fb3)))
    if OPT["stamp"]:
        S("s_memrealtime s[100:101]")
        S("s_waitcnt lgkmcnt(0)")
        if OPT["ext"]:
            k = OPT["ext"]
            S(f"s_sub_u32 s42, s{84+2*k}, s84\nL_ext:\ns_memrealtime s[44:45]\ns_waitcnt lgkmcnt(0)\ns_sub_u32 s43, s44, s100\ns_cmp_lt_u32 s43, s42\ns_cbranch_scc1 L_ext\ns_endpgm")
        S.srd(S_T0, P_WS, 0x20000, WS_ST)
        S("s_lshl_b32 s44, s2, 2\ns_add_u32 s44, s44, s3\ns_lshl_b32 s44, s44, 6")
        S("s_mov_b64 exec, 1\nv_mov_b32 v0, s44")
        for k in range(9): S(f"v_mov_b32 v{16+k}, s{84+2*k}")
        for k in range(3):
            S(f"buffer_store_dwordx4 v[{16+4*k}:{19+4*k}], v0, {srdt(S_T0)}, 0 offen offset:{16*k}")
        if OPT["dbgt"]:
            S("v_mov_b32 v0, 0\nv_not_b32 v30, v16")
            S(f"buffer_atomic_umax v24, v0, {srdt(S_DBG)}, 0 offen offset:4 sc1")
            S(f"buffer_atomic_umax v30, v0, {srdt(S_DBG)}, 0 offen offset:8 sc1")
            for i, k in enumerate((2, 5, 3, 6, 8)):
                S(f"v_sub_u32 v{31+i}, v{16+k}, v16")
                S(f"buffer_atomic_umax v{31+i}, v0, {srdt(S_DBG)}, 0 offen offset:{12+4*i} sc1")
    S("L_END:\ns_endpgm\nL_CODE_END:")
    for c in COLD: S(c)

    items = S.resolve()
    segs = {}
    cur = -1
    for it in items:
        if isinstance(it, tuple) and it[0] == "mark":
            cur = it[1][1]
            continue
        segs.setdefault(cur, []).append(it)
    norm = lambda x: re.sub(r"_@\d+", "_lp", x)
    body = []
    n = len(segs[1])
    LS = range(1, 6)
    for sg in LS:
        assert len(segs[sg]) == n, (sg, len(segs[sg]), n)
    for i in range(n):
        its = [segs[sg][i] for sg in LS]
        if isinstance(its[0], tuple):
            assert all(x[0] == "wait" and x[1] == its[0][1] for x in its)
            vals = [x[2] for x in its if x[2] is not None]
            body.append(("wait", its[0][1], min(vals) if vals else None))
        else:
            assert all(norm(x) == norm(its[0]) for x in its), its
            body.append(norm(its[0]))
    out = []
    for sg in (-1, 0): out += flat(segs[sg])
    out += ["s_mov_b32 s38, 5", "s_nop 7"]
    if OPT["stamp"] and OPT["sm"] == 0: out += ["s_memrealtime s[94:95]"]
    if OPT["stamp"] and OPT["sm"] == 7: out += ["s_memrealtime s[86:87]", "s_memtime s[88:89]"]
    out += [".p2align 6", "L_LOOP:"]
    fb = flat(body)
    if OPT["ab"] & 1: fb = [x for x in fb if not x.endswith(" lds")]
    if OPT["ab"] & 2: fb = [x for x in fb if not x.startswith("buffer_load_dword v")]
    if OPT["ab"] & 4: fb = [x for x in fb if not x.startswith("buffer_load_dwordx4 v[")]
    if OPT["ab"] & 8: fb = [x for x in fb if x != "s_barrier"]
    if OPT["ab"] & 16: fb = [x for x in fb if not x.startswith("ds_read_b64_tr")]
    if OPT["ab"] & 32: fb = [x for x in fb if not (x.startswith("s_cmp_eq_u32 s49") or x.startswith("s_cbranch_scc0 L_ws") or x.endswith(" lds") or "m0" in x)]
    if OPT["ab"] & 64: fb = [x for x in fb if not x.startswith("v_mfma") and not x.startswith("v_smfmac")]
    out += fb
    if OPT["stamp"] and OPT["sm"] == 7: out += ["s_cmp_lg_u32 s38, 5", "s_cbranch_scc1 L_nst", "s_memtime s[94:95]", "L_nst:"]
    out += ["s_sub_u32 s38, s38, 1", "s_cmp_lg_u32 s38, 0", "s_cbranch_scc1 L_LOOP"]
    if OPT["stamp"] and OPT["sm"] == 7: out += ["s_memrealtime s[90:91]", "s_memtime s[92:93]"]
    for sg in (6, 7, 8): out += flat(segs[sg])
    return "\n".join(out).replace("_@", "_")


def main():
    print("; generated by dev/gen8.py - deep_cross_pnn recsys, single fused kernel")
    print(f"; @launch grid=(256,1,1) block=(256,1,1) lds={LDS_SZ}")
    print('.amdgcn_target "amdgcn-amd-amdhsa--gfx950"\n.text')
    print(gen())
    print(f""".section .rodata,"a"
.p2align 6
.amdhsa_kernel {NAME}
  .amdhsa_next_free_vgpr 512
  .amdhsa_next_free_sgpr 102
  .amdhsa_accum_offset 256
  .amdhsa_group_segment_fixed_size 0
  .amdhsa_kernarg_size 80
  .amdhsa_user_sgpr_count 2
  .amdhsa_user_sgpr_kernarg_segment_ptr 1
  .amdhsa_system_sgpr_workgroup_id_x 1
  .amdhsa_float_denorm_mode_32 3
.end_amdhsa_kernel""")


main()
```
